```python
import torch

def _softmax(x, axis=-1):
    return torch.softmax(x, dim=axis)
def _gelu(x):
    return torch.nn.functional.gelu(x, approximate="tanh")
def _silu(x):
    return torch.nn.functional.silu(x)
def _sigmoid(x):
    return torch.sigmoid(x)
def _layernorm(x, axis=-1, eps=1e-5):
    m = x.mean(dim=axis, keepdim=True)
    v = x.var(dim=axis, keepdim=True, unbiased=False)
    return (x - m) / torch.sqrt(v + eps)
def _scatter_add(tgt, idx, src, axis=0):
    return tgt.clone().index_add_(axis, idx, src)
def _segment_sum(src, seg, n):
    out = torch.zeros((n,) + src.shape[1:], dtype=src.dtype)
    return out.index_add_(0, seg, src)
def _pad(x, pw):
    flat = tuple(v for pair in reversed(pw) for v in pair)
    return torch.nn.functional.pad(x, flat)

kernel_name = 'concat_heads__sliding_block_cached__compressed_kv_cla__decode'

def setup_inputs():

    _w = (lambda a: (lambda t: t.to(torch.bfloat16) if t.is_floating_point() else t)(torch.as_tensor(a)))
    def _A_setup():
        B, Sq, D = 4, 1, 512
        Hq, Hkv, Sk, Dh = 32, 8, 4096, 128
        assert Hq % Hkv == 0, (Hq, Hkv)
        return {
            "x": _w((lambda *s: torch.randn(*s, dtype=torch.bfloat16) * 0.8)(B, Sq, D)),
            "k_cache": _w((lambda *s: torch.randn(*s, dtype=torch.bfloat16) * 0.8)(B, Hkv, Sk, Dh)),
            "v_cache": _w((lambda *s: torch.randn(*s, dtype=torch.bfloat16) * 0.05)(B, Hkv, Sk, Dh)),
            "wq": _w((lambda *s: torch.randn(*s, dtype=torch.bfloat16) * 0.8)(D, Hq * Dh) * (D ** -0.5)),
            "wo": _w((lambda *s: torch.randn(*s, dtype=torch.bfloat16) * 0.05)(Hq * Dh, D) * ((Hq * Dh) ** -0.5)),
        }
    _A_in = _A_setup()

    def _B_setup():
        B, H, Sq, Sk, D, M = 4, 32, 1, 4096, 128, 512
        Dc = 4 * D
        return {
            "x": _w((lambda *s: torch.randn(*s, dtype=torch.bfloat16) * 1.6)(B, Sq, M)),
            "c_kv": _w((lambda *s: torch.randn(*s, dtype=torch.bfloat16) * 0.1)(B, Sk, Dc)),
            "w_q": _w((lambda *s: torch.randn(*s, dtype=torch.bfloat16) * 3.2)(M, H, D) * (M ** -0.5)),
            "w_uk": _w((lambda *s: torch.randn(*s, dtype=torch.bfloat16) * 3.2)(Dc, H, D) * (Dc ** -0.5)),
            "w_uv": _w((lambda *s: torch.randn(*s, dtype=torch.bfloat16) * 0.1)(Dc, H, D) * (Dc ** -0.5)),
            "w_o": _w((lambda *s: torch.randn(*s, dtype=torch.bfloat16) * 0.1)(H, D, M) * ((H * D) ** -0.5)),
        }
    _B_in = _B_setup()

    return {
        "A_x": _A_in["x"],
        "A_k_cache": _A_in["k_cache"],
        "A_v_cache": _A_in["v_cache"],
        "A_wq": _A_in["wq"],
        "A_wo": _A_in["wo"],
        "B_x": _B_in["x"],
        "B_c_kv": _B_in["c_kv"],
        "B_w_q": _B_in["w_q"],
        "B_w_uk": _B_in["w_uk"],
        "B_w_uv": _B_in["w_uv"],
        "B_w_o": _B_in["w_o"],
    }

def reference(A_x, A_k_cache, A_v_cache, A_wq, A_wo, B_x, B_c_kv, B_w_q, B_w_uk, B_w_uv, B_w_o):
    def _A_ref(x, k_cache, v_cache, wq, wo):
        B, Sq, D = x.shape
        Hq, Dh = 32, 128
        Hkv, Sk = k_cache.shape[1], k_cache.shape[2]
        W = min(4096, max(256, Sk // 4))
        rep = Hq // Hkv
        q = (lambda x, *d: x.permute(*d))((x @ wq).reshape(B, Sq, Hq, Dh), 0, 2, 1, 3)
        k = (lambda x, n, axis: torch.repeat_interleave(x, n, dim=axis))(k_cache[:, :, Sk - W:, :], rep, axis=1)
        v = (lambda x, n, axis: torch.repeat_interleave(x, n, dim=axis))(v_cache[:, :, Sk - W:, :], rep, axis=1)
        scores = torch.einsum("bhqd,bhkd->bhqk", q, k) * (Dh ** -0.5)
        p = _softmax(scores, axis=-1)
        o = torch.einsum("bhqk,bhkd->bhqd", p, v)
        return (lambda x, *d: x.permute(*d))(o, 0, 2, 1, 3).reshape(B, Sq, Hq * Dh) @ wo

    def _B_ref(x, c_kv, w_q, w_uk, w_uv, w_o):
        B, Sq, M = x.shape[0], x.shape[1], x.shape[2]
        Sk = c_kv.shape[1]
        H, D = w_q.shape[1], w_q.shape[2]
        q = torch.einsum("bqm,mhd->bhqd", x, w_q)
        k = torch.einsum("bkc,chd->bhkd", c_kv, w_uk)
        v = torch.einsum("bkc,chd->bhkd", c_kv, w_uv)
        scores = torch.einsum("bhqd,bhkd->bhqk", q, k) * (D ** -0.5)
        off = Sk - Sq
        qi = torch.arange(Sq)[:, None]
        kj = torch.arange(Sk)[None, :]
        cmask = kj <= (qi + off)
        scores = torch.where(cmask[None, None], scores, -1e9)
        p = _softmax(scores, axis=-1)
        ctx = torch.einsum("bhqk,bhkd->bhqd", p, v)
        return torch.einsum("bhqd,hdm->bqm", ctx, w_o)

    a = _A_ref(A_x, A_k_cache, A_v_cache, A_wq, A_wo)
    b = _B_ref(B_x, B_c_kv, B_w_q, B_w_uk, B_w_uv, B_w_o)
    return torch.concatenate([a, b], axis=-1)
```

```python
NAME = 'concat_heads__sliding_block_cached__compressed_kv_cla__decode'
HEADER = open('cdna_kernels/' + NAME + '.s.ref').read().split('; Override launch')[0]
class Asm:
    def __init__(self):
        self.lines = []
        self.nlab = 0
    def __call__(self, s=''):
        for l in s.split('\n'):
            self.lines.append('    ' + l.strip() if l.strip() and not l.strip().endswith(':') else l.strip())
    def label(self, name):
        self.lines.append(name + ':')
    def newlabel(self, p='L'):
        self.nlab += 1
        return f'{p}_{self.nlab}'
    def text(self):
        return '\n'.join(self.lines) + '\n'
def kernel_file(kernels, launches=None):
    out = HEADER
    if len(launches) == 1 and launches[0][0] == NAME + '_kernel':
        _, g, b, lds = launches[0]
        out += f'; @launch grid=({g},1,1) block=({b},1,1) lds={lds}\n'
    else:
        for (lab, g, b, lds) in launches:
            out += f'; @launch kernel={lab} grid=({g},1,1) block=({b},1,1) lds={lds}\n'
    out += '.amdgcn_target "amdgcn-amd-amdhsa--gfx950"\n.text\n'
    for (lab, body, vg, sg, acc) in kernels:
        out += f'.globl {lab}\n.p2align 8\n.type {lab},@function\n{lab}:\n' + body
    out += '.section .rodata,"a"\n'
    for (lab, body, vg, sg, acc) in kernels:
        out += f'''.p2align 6
.amdhsa_kernel {lab}
  .amdhsa_next_free_vgpr {vg}
  .amdhsa_next_free_sgpr {sg}
  .amdhsa_accum_offset {acc}
  .amdhsa_group_segment_fixed_size 0
  .amdhsa_kernarg_size 112
  .amdhsa_user_sgpr_count 2
  .amdhsa_user_sgpr_kernarg_segment_ptr 1
  .amdhsa_system_sgpr_workgroup_id_x 1
.end_amdhsa_kernel
'''
    return out
```

```python
import re
TRANS = ('v_exp_f32', 'v_log_f32', 'v_rcp_f32', 'v_rsq_f32', 'v_sqrt_f32', 'v_sin_f32', 'v_cos_f32')
def regs_of(tok):
    tok = tok.strip()
    tok = tok.lstrip('-')
    if tok.startswith('abs('): tok = tok[4:-1]
    if tok.startswith('|'): tok = tok.strip('|')
    m = re.fullmatch(r'([vsa])\[(\d+):(\d+)\]', tok)
    if m: return {(m.group(1), i) for i in range(int(m.group(2)), int(m.group(3)) + 1)}
    m = re.fullmatch(r'([vsa])(\d+)', tok)
    if m: return {(m.group(1), int(m.group(2)))}
    if tok == 'vcc': return {('s', 'vcc')}
    if tok == 'exec': return {('s', 'exec')}
    if tok == 'm0': return {('s', 'm0')}
    return set()
class I:
    def __init__(self, line):
        self.line = line
        s = line.split(';')[0].strip()
        self.op = s.split()[0]
        rest = s[len(self.op):].strip()
        parts = [p.strip() for p in re.split(r',(?![^\[]*\])', rest)] if rest else []
        self.mods = ''
        if parts:
            lp = parts[-1].split(None, 1)
            parts[-1] = lp[0]
            self.mods = lp[1] if len(lp) > 1 else ''
        self.parts = parts
        op = self.op
        R = [regs_of(p) for p in parts]
        self.mfma = op.startswith('v_mfma')
        self.valu = op.startswith('v_') and not self.mfma
        self.trans = op.startswith(TRANS)
        self.dpp = '_dpp' in op or 'quad_perm' in self.mods or 'row_' in self.mods
        self.perml = op.startswith('v_permlane')
        self.vmem = op.startswith(('buffer_', 'global_', 'flat_'))
        self.ds = op.startswith('ds_')
        self.salu = op.startswith('s_')
        self.ldsdma = self.vmem and (re.search(r'\blds\b', self.mods) is not None or '_lds_' in op)
        self.w = set(); self.r = set(); self.srcC = set(); self.srcAB = set(); self.stdata = set()
        allr = set().union(*R) if R else set()
        if self.mfma:
            self.w = R[0]; self.srcAB = R[1] | R[2]; self.srcC = R[3]; self.r = self.srcAB | self.srcC
            self.passes = 8 if '32x32x16' in op else 4
        elif self.perml:
            self.w = R[0] | R[1]; self.r = self.w
        elif self.valu:
            self.w = R[0]; self.r = set().union(*R[1:]) if len(R) > 1 else set()
            if op.startswith(('v_fmac', 'v_dot2c', 'v_writelane')) or self.dpp or 'UNUSED_PRESERVE' in self.mods: self.r |= R[0]
            if op.startswith(('v_add_co', 'v_addc_co', 'v_sub_co')):
                self.w = R[0] | R[1]; self.r = set().union(*R[2:])
            if op.startswith('v_cmpx'): self.w |= {('s', 'exec')}
        elif self.vmem:
            if 'store' in op or 'atomic' in op:
                self.r = allr
                if 'x4' in op or 'x3' in op:
                    self.stdata = R[0] if op.startswith('buffer_') else R[1]
            elif self.ldsdma:
                self.r = allr | {('s', 'm0')}
            elif op in ('buffer_wbl2', 'buffer_inv'):
                pass
            else:
                self.w = R[0]; self.r = set().union(*R[1:])
        elif self.ds:
            if op.startswith(('ds_write', 'ds_add_u32', 'ds_add_f32')): self.r = allr
            else:
                self.w = R[0]; self.r = set().union(*R[1:])
        elif self.salu:
            if op.startswith(('s_cmp', 's_bitcmp', 's_cbranch', 's_branch', 's_waitcnt', 's_nop', 's_barrier', 's_endpgm', 's_sleep', 's_setprio')):
                self.r = allr
            else:
                self.w = R[0] if R else set(); self.r = set().union(*R[1:]) if len(R) > 1 else set()
        self.states = 1
        if op == 's_nop': self.states = int(parts[0], 0) + 1
def vg(s): return {x for x in s if x[0] in 'va'}
def sg(s): return {x for x in s if x[0] == 's'}
def need(p, c):
    n = 0
    if p.valu:
        wv = vg(p.w); ws = sg(p.w)
        if c.mfma and wv & c.r: n = max(n, 2)
        if c.valu and c.dpp and wv & c.r: n = max(n, 2)
        if c.perml and wv & c.r: n = max(n, 2)
        if c.op.startswith(('v_readlane', 'v_readfirstlane')) and wv & c.r: n = max(n, 1)
        if p.trans and c.valu and not c.trans and wv & c.r: n = max(n, 1)
        if p.trans and (c.vmem or c.ds) and wv & c.r: n = max(n, 1)
        if ('sdwa' in p.op or 'op_sel' in p.mods) and c.valu and wv & (c.r | c.w): n = max(n, 1)
        if ws:
            if c.valu and ws & c.r: n = max(n, 4 if c.op.startswith(('v_readlane', 'v_writelane')) else 2)
            if c.vmem and ws & c.r: n = max(n, 5)
            if ('s', 'exec') in ws:
                if c.dpp: n = max(n, 5)
                if c.mfma or c.perml or c.op.startswith(('v_readlane', 'v_readfirstlane', 'v_writelane')): n = max(n, 4)
            if c.salu and ws & c.r and not c.op.startswith('s_cbranch'): n = max(n, 2)
    if p.mfma:
        k = {4: 0, 8: 1}[p.passes]
        if c.mfma:
            if p.w & c.srcAB: n = max(n, (8, 12)[k])
            if p.w & c.srcC and not (p.w == c.srcC and p.passes == c.passes): n = max(n, (6, 10)[k])
            if p.w & c.w and not (p.w == c.srcC): n = max(n, (6, 10)[k])
        elif (c.valu or c.vmem or c.ds) and p.w & (c.r | c.w): n = max(n, (8, 12)[k])
        if c.valu and p.srcC & c.w: n = max(n, (3, 7)[k])
    if p.stdata and p.stdata & c.w: n = max(n, 2 if (c.valu or c.mfma) else 1)
    if p.salu and ('s', 'm0') in p.w and c.ldsdma: n = max(n, 1)
    return n
def fix(text, verbose=False):
    out = []; hist = []
    added = 0
    for line in text.split('\n'):
        s = line.split(';')[0].strip()
        if not s or s.endswith(':') or s.startswith('.'):
            out.append(line); continue
        c = I(line)
        dist = 0; req = 0
        for p in reversed(hist):
            n = need(p, c)
            if n - dist > req: req = n - dist; why = p
            dist += p.states
            if dist > 20: break
        if req > 0:
            nop = f'    s_nop {req-1}'
            if verbose: nop += f'   ; hz: {why.op}'
            out.append(nop); hist.append(I(nop)); added += req
        out.append(line); hist.append(c)
        if c.op in ('s_branch', 's_endpgm'): hist = []
        hist = hist[-24:]
    return '\n'.join(out), added
```

```python
import sys, struct, math
from asmlib import *
import hazard

DEF = dict(
    nt='nt',
    diag=False,
    ws0=0,
    maxpoll=20000,
    kv_depth=8,
    c_depth=8,
    wo_when='early',
    codepf=True,
)

def f2u(x): return struct.unpack('<I', struct.pack('<f', x))[0]
def vr(a, n=4): return f'v[{a}:{a+n-1}]' if n > 1 else f'v{a}'

def gen(P):
    P = {**DEF, **P}
    NT = P['nt']
    W0 = P['ws0']
    EPOCH = W0
    QFLAG = W0 + 0x1000
    AST = W0 + 0x8000
    QABS = W0 + 0x20000
    QPB = W0 + 0x40000
    QPA = W0 + 0x80000
    OST = W0 + 0xC0000
    CTX = W0 + 0x100000
    OA = W0 + 0x200000
    FIN = W0 + 0x300000
    OP = W0 + 0x500000
    STAMP = 0x8000000
    CSC = f2u(math.log2(math.e) / math.sqrt(128.0))
    a = Asm()
    diag = P['diag']
    def stamp(k):
        if diag: a(f's_memrealtime s[{32+2*k}:{33+2*k}]')
    WS = 's[12:15]'; SW = 's[16:19]'; S2 = 's[20:23]'
    def srd(r, ptr, size):
        a(f's_mov_b32 s{r}, s{ptr}\ns_mov_b32 s{r+1}, s{ptr+1}\ns_mov_b32 s{r+2}, {hex(size)}\ns_mov_b32 s{r+3}, 0x20000')
    PT = dict(A_x=64, K=66, V=68, wq=70, wo=72, B_x=74, ckv=76, w_q=78, w_uk=80, w_uv=82, w_o=84, out=86)
    def epoch_issue():
        a(f's_load_dword s24, s[12:13], {hex(EPOCH)}' if EPOCH < (1 << 20) else f's_mov_b32 s25, {hex(EPOCH)}\ns_load_dword s24, s[12:13], s25')
    def epoch_finish():
        a('''s_waitcnt lgkmcnt(0)
        s_add_u32 s24, s24, 0x01010101
        s_and_b32 s8, s24, 0xff
        s_bfe_u32 s9, s24, 0x80008
        s_bfe_u32 s10, s24, 0x80010
        s_lshr_b32 s11, s24, 24''')
    def transpose_tile(dst, raw, jj):
        w = jj >> 1; sel = 's30' if (jj & 1) == 0 else 's31'
        for p in range(4):
            a(f'v_perm_b32 v{dst+p}, v{raw+(2*p+1)*4+w}, v{raw+(2*p)*4+w}, {sel}')
    def perm_consts():
        a('s_mov_b32 s30, 0x05040100\ns_mov_b32 s31, 0x07060302')
    def tag_check(acc, regs, first=True):
        for k, r in enumerate(regs):
            if first and k == 0:
                a(f'v_xor_b32 v{acc}, s{8+(k&3)}, v{r}')
            else:
                a(f'v_bitop3_b32 v{acc}, v{r}, s{8+(k&3)}, v{acc} bitop3:0xbe')
    def poll_tail(acc, lab, cnt='s7', mask=0xff):
        done = a.newlabel('Lpd')
        if mask is not None: a(f'v_and_b32 v{acc}, {hex(mask)}, v{acc}')
        a(f'''v_cmp_ne_u32 vcc, 0, v{acc}
        s_cbranch_vccz {done}
        s_add_u32 {cnt}, {cnt}, 1
        s_cmp_lt_u32 {cnt}, {P['maxpoll']}
        s_cbranch_scc1 {lab}
        {done}:''')
    def allreduce_rows(op, x, t):
        a(f'''v_mov_b32 v{t}, v{x}
        v_permlane32_swap_b32 v{x}, v{t}
        {op} v{x}, v{x}, v{t}
        v_mov_b32 v{t}, v{x}
        v_permlane16_swap_b32 v{x}, v{t}
        {op} v{x}, v{x}, v{t}''')
    def allreduce_quad(op, x):
        a(f'''{op}_dpp v{x}, v{x}, v{x} quad_perm:[1,0,3,2] row_mask:0xf bank_mask:0xf
        {op}_dpp v{x}, v{x}, v{x} quad_perm:[2,3,0,1] row_mask:0xf bank_mask:0xf''')
    def qgather(voff, soff, G, Q, scratch):
        lab = a.newlabel('Lqg')
        a(f's_mov_b32 s7, 0\ns_add_u32 s26, {soff}, 4096\n{lab}:')
        for k in range(8):
            a(f'buffer_load_dwordx4 {vr(G+4*k)}, v{voff}, {WS}, {soff if k < 4 else "s26"} offen offset:{(k&3)*1024} sc1')
        for k in range(8):
            a(f's_waitcnt vmcnt({7-k})')
            tag_check(scratch, range(G+4*k, G+4*k+4), first=(k == 0))
        poll_tail(scratch, lab)
        for jj in range(8):
            a(f'v_add_f32 v{G+jj}, v{G+jj}, v{G+8+jj}')
            a(f'v_add_f32 v{G+16+jj}, v{G+16+jj}, v{G+24+jj}')
        for jj in range(8):
            a(f'v_add_f32 v{G+jj}, v{G+jj}, v{G+16+jj}')
        for p in range(4):
            a(f'v_cvt_pk_bf16_f32 v{Q+p}, v{G+2*p}, v{G+2*p+1}')
    def diag_mfma(W, n, Q, D, ACC):
        for e0 in range(0, n, 8):
            for e in range(8):
                a(f'v_mfma_f32_16x16x32_bf16 {vr(D+4*e)}, {vr(W+4*(e0+e))}, {vr(Q)}, 0')
            for e in range(8):
                a(f'v_add_f32_dpp v{ACC+e0+e}, v{D+4*e+1}, v{D+4*e} quad_perm:[1,1,1,1] row_mask:0xf bank_mask:0xf')
            for r in (2, 3):
                for e in range(8):
                    a(f'v_add_f32_dpp v{ACC+e0+e}, v{D+4*e+r}, v{ACC+e0+e} quad_perm:[{r},{r},{r},{r}] row_mask:0xf bank_mask:0xf')
    def tag_store(D, OUT, vmask, voff, soff0, soff1, off0=0, off1=0):
        for half in range(2):
            for e in range(4):
                a(f'v_and_or_b32 v{OUT+4*half+e}, v{D+4*(4*half+e)}, v{vmask}, s{8+e}')
            a(f'buffer_store_dwordx4 {vr(OUT+4*half)}, v{voff}, {WS}, {(soff0, soff1)[half]} offen offset:{(off0, off1)[half]} sc1')

    stamp(0)
    a(f'''
    s_cmp_ge_u32 s2, 256
    s_cbranch_scc1 L_exit
    s_load_dwordx2 s[12:13], s[0:1], 104
    s_load_dwordx16 s[64:79], s[0:1], 0
    s_load_dwordx8 s[80:87], s[0:1], 64
    v_lshrrev_b32 v1, 6, v0
    v_and_b32 v0, 63, v0
    v_readfirstlane_b32 s3, v1
    s_and_b32 s4, s2, 7
    s_lshl_b32 s4, s4, 4
    s_bfe_u32 s5, s2, 0x40003
    s_add_u32 s4, s4, s5          ; i = xcd*16 + y
    s_lshr_b32 s5, s4, 2          ; h
    s_and_b32 s6, s4, 3           ; quarter
    s_mov_b32 s14, 0x10000000
    s_mov_b32 s15, 0x20000
    ''')
    if diag:
        for k in range(1, 16): a(f's_mov_b64 s[{32+2*k}:{33+2*k}], 0')
    a('''
    s_cmp_ge_u32 s2, 128
    s_cbranch_scc1 L_B
    s_cmp_ge_u32 s3, 4
    s_cbranch_scc1 L_T4
    s_bitcmp1_b32 s3, 0
    s_cbranch_scc1 L_T2
    ''')
    X = 4; WR = 32; T = 160; D = 192; OUT = 224
    a(f'''
    v_lshrrev_b32 v2, 4, v0
    v_and_b32 v3, 15, v0
    v_lshlrev_b32 v1, 18, v2
    v_lshl_add_u32 v1, v3, 4, v1          ; W voffset = g*32*8192 + n*16
    v_lshrrev_b32 v3, 2, v3
    v_lshlrev_b32 v2, 6, v2
    v_lshl_add_u32 v2, v3, 10, v2         ; x voffset = b*1024 + g*64
    s_lshl_b32 s25, s6, 20
    s_lshl_b32 s26, s5, 8
    s_add_u32 s25, s25, s26               ; W soffset
    s_lshl_b32 s26, s6, 8                 ; x soffset
    s_movk_i32 s27, 0x2000
    s_waitcnt lgkmcnt(0)
    s_cmp_eq_u32 s3, 0
    s_cselect_b32 s16, s{PT['w_q']}, s{PT['wq']}
    s_cselect_b32 s17, s{PT['w_q']+1}, s{PT['wq']+1}
    s_cselect_b32 s20, s{PT['B_x']}, s{PT['A_x']}
    s_cselect_b32 s21, s{PT['B_x']+1}, s{PT['A_x']+1}
    s_mov_b32 s18, 0x400000
    s_mov_b32 s19, 0x20000
    s_movk_i32 s22, 0x1000
    s_mov_b32 s23, 0x20000
    ''')
    epoch_issue()
    a('''
    s_cbranch_scc1 L_T1go
    s_waitcnt lgkmcnt(0)
    s_barrier
    L_T1go:
    ''')
    for u in range(4):
        a(f'buffer_load_dwordx4 {vr(X+4*u)}, v2, {S2}, s26 offen offset:{16*u}')
    for k in range(32):
        a(f'buffer_load_dwordx4 {vr(WR+4*k)}, v1, {SW}, s25 offen {NT}')
        if k < 31: a('s_add_u32 s25, s25, s27')
    stamp(1)
    perm_consts()
    epoch_finish()
    a(f'''
    v_mov_b32 v3, 0xffffff00
    v_lshlrev_b32 v2, 4, v0
    s_cmp_eq_u32 s3, 0
    s_cselect_b32 s25, {hex(QPB)}, {hex(QPA)}
    s_lshl_b32 s26, s4, 11
    s_add_u32 s25, s25, s26
    '''.replace(f's_cselect_b32 s25, {hex(QPB)}, {hex(QPA)}', f's_mov_b32 s28, {hex(QPA)}\ns_cselect_b32 s25, {hex(QPB)}, s28'))
    for u in range(4):
        a(f's_waitcnt vmcnt({24-8*u})')
        if u == 3: stamp(2)
        for jj in range(8):
            transpose_tile(T+4*jj, WR+32*u, jj)
            if jj >= 1:
                j = jj - 1
                a(f'v_mfma_f32_16x16x32_bf16 {vr(D+4*j)}, {vr(X+4*u)}, {vr(T+4*j)}, {vr(D+4*j) if u else 0}')
        a(f'v_mfma_f32_16x16x32_bf16 {vr(D+28)}, {vr(X+4*u)}, {vr(T+28)}, {vr(D+28) if u else 0}')
    tag_store(D, OUT, 3, 2, 's25', 's25', 0, 1024)
    stamp(3)
    a('''
    s_cmp_eq_u32 s3, 0
    s_cbranch_scc0 L_T3b
    s_barrier                              ; A2
    s_barrier                              ; A3
    s_branch L_T5
    L_T3b:
    ''')
    a(f'''
    v_bfe_u32 v1, v0, 2, 2
    v_lshlrev_b32 v1, 13, v1              ; hh*8192
    v_lshrrev_b32 v4, 4, v0
    v_lshl_add_u32 v1, v4, 6, v1
    v_and_b32 v4, 3, v0
    v_lshl_add_u32 v1, v4, 4, v1
    s_lshr_b32 s25, s4, 4                 ; g_kv
    s_lshl_b32 s25, s25, 15
    s_bfe_u32 s26, s4, 0x20002            ; b
    s_lshl_b32 s26, s26, 8
    s_add_u32 s25, s25, s26
    s_add_u32 s25, s25, {hex(QPA)}
    ''')
    qgather(1, 's25', 32, 8, 5)
    a('''
    ds_write_b128 v2, v[8:11]
    s_waitcnt lgkmcnt(0)
    ''')
    stamp(4)
    a('''
    s_barrier                              ; A3
    s_branch L_done
    ''')
    a.label('L_T2')
    WR = 32; G = 96; Q = 8; D = 128; ACC = 160; PK = 176
    a(f'''
    v_bfe_u32 v3, v0, 2, 2                ; rho / b
    v_lshrrev_b32 v4, 4, v0               ; g
    v_and_b32 v5, 3, v0
    v_lshlrev_b32 v5, 4, v5
    v_lshl_add_u32 v5, v4, 6, v5          ; g*64 + k*16
    v_lshl_add_u32 v1, v3, 18, v5         ; W voffset
    v_lshl_add_u32 v2, v3, 8, v5
    s_lshl_b32 s25, s6, 20
    s_lshl_b32 s26, s5, 8
    s_add_u32 s25, s25, s26
    s_lshr_b32 s28, s3, 1                 ; z
    s_lshl_b32 s26, s28, 17
    s_add_u32 s25, s25, s26
    s_movk_i32 s27, 0x2000
    s_waitcnt lgkmcnt(0)
    ''')
    srd(16, PT['w_uk'], 0x400000)
    epoch_issue()
    for k in range(16):
        a(f'buffer_load_dwordx4 {vr(WR+4*k)}, v1, {SW}, s25 offen {NT}')
        if k < 15: a('s_add_u32 s25, s25, s27')
    if P['codepf']:
        a(f'''
        s_getpc_b64 s[96:97]
        L_pc1:
        s_sub_u32 s96, s96, L_pc1-{NAME}_kernel
        s_subb_u32 s97, s97, 0
        s_and_b32 s26, s4, 15
        s_lshl_b32 s26, s26, 10
        s_lshl_b32 s29, s28, 9
        s_add_u32 s26, s26, s29
        v_lshl_add_u32 v6, v0, 3, s26
        v_min_u32 v6, L_exit-{NAME}_kernel-8, v6
        global_load_dwordx2 v[12:13], v6, s[96:97]
        ''')
    stamp(1)
    epoch_finish()
    a(f'''
    s_lshl_b32 s25, s5, 13
    s_add_u32 s25, s25, {hex(QPB)}
    v_lshlrev_b32 v6, 15, v3
    v_lshl_add_u32 v6, v4, 6, v6
    s_lshl_b32 s29, s4, 8
    s_lshl_b32 s28, s28, 5
    s_add_u32 s29, s29, s28
    s_add_u32 s29, s29, {hex(QABS)}
    s_waitcnt vmcnt(8)
    ''')
    stamp(2)
    qgather(2, 's25', G, Q, 7)
    stamp(3)
    diag_mfma(WR, 16, Q, D, ACC)
    for p in range(8):
        a(f'v_cvt_pk_bf16_f32 v{PK+p}, v{ACC+2*p}, v{ACC+2*p+1}')
    a(f'''
    s_mov_b32 exec_lo, 0x11111111
    s_mov_b32 exec_hi, 0x11111111
    buffer_store_dwordx4 {vr(PK)}, v6, {WS}, s29 offen sc1
    buffer_store_dwordx4 {vr(PK+4)}, v6, {WS}, s29 offen offset:16 sc1
    s_mov_b64 exec, -1
    ''')
    stamp(4)
    a(f'''
    v_lshlrev_b32 v6, 9, v0
    v_mov_b32 v7, s24
    s_lshl_b32 s29, s4, 2
    s_add_u32 s29, s29, {hex(QFLAG)}
    s_waitcnt vmcnt(0)
    s_barrier                              ; A2
    s_cmp_eq_u32 s3, 1
    s_cbranch_scc0 L_done
    s_mov_b64 exec, 0xff
    buffer_store_dword v7, v6, {WS}, s29 offen sc1
    s_mov_b64 exec, -1
    ''')
    stamp(5)
    a('s_barrier                              ; A3')
    a.label('L_T5')
    G = 32
    srd(20, PT['out'], 8192)
    a(f'''
    v_lshlrev_b32 v2, 4, v0
    s_lshl_b32 s25, s4, 14
    s_lshl_b32 s26, s3, 13
    s_add_u32 s25, s25, s26
    s_add_u32 s25, s25, {hex(FIN)}
    s_add_u32 s26, s25, 4096
    v_and_b32 v3, 3, v0
    v_lshrrev_b32 v4, 4, v0
    v_lshl_add_u32 v3, v3, 3, v4
    v_lshlrev_b32 v3, 1, v3
    s_bfe_u32 s27, s4, 0x20004
    s_lshl_b32 s27, s27, 11
    s_lshr_b32 s28, s4, 6
    s_lshl_b32 s28, s28, 10
    s_add_u32 s27, s27, s28
    s_and_b32 s28, s4, 15
    s_lshl_b32 s28, s28, 6
    s_add_u32 s27, s27, s28
    s_lshl_b32 s28, s3, 3
    s_add_u32 s27, s27, s28
    s_mov_b32 s7, 0
    s_barrier
    ''')
    stamp(6)
    a.label('L_T5p')
    for k in range(8):
        a(f'buffer_load_dwordx4 {vr(G+4*k)}, v2, {WS}, {"s25" if k < 4 else "s26"} offen offset:{(k&3)*1024} sc1')
    for k in range(8):
        a(f's_waitcnt vmcnt({7-k})')
        tag_check(5, range(G+4*k, G+4*k+4), first=(k == 0))
    poll_tail(5, 'L_T5p')
    stamp(7)
    for st in (16, 8, 4):
        for e in range(st):
            a(f'v_add_f32 v{G+e}, v{G+e}, v{G+st+e}')
    a(f'''
    v_permlane32_swap_b32 v{G}, v{G+2}
    v_permlane32_swap_b32 v{G+1}, v{G+3}
    v_add_f32 v{G}, v{G}, v{G+2}
    v_add_f32 v{G+1}, v{G+1}, v{G+3}
    v_permlane16_swap_b32 v{G}, v{G+1}
    v_add_f32 v{G}, v{G}, v{G+1}
    v_add_f32_dpp v{G}, v{G}, v{G} row_ror:8 row_mask:0xf bank_mask:0xf
    v_add_f32_dpp v{G}, v{G}, v{G} row_ror:4 row_mask:0xf bank_mask:0xf
    v_cvt_pk_bf16_f32 v{G}, v{G}, v{G}
    s_mov_b32 exec_lo, 0x000f000f
    s_mov_b32 exec_hi, 0x000f000f
    buffer_store_short v{G}, v3, {S2}, s27 offen
    s_or_b32 s28, s4, s3
    s_cmp_eq_u32 s28, 0
    s_cbranch_scc0 L_T5e
    s_mov_b64 exec, 1
    v_mov_b32 v6, s24
    s_mov_b32 s25, {hex(EPOCH)}
    buffer_store_dword v6, v2, {WS}, s25 offen
    L_T5e:
    s_mov_b64 exec, -1
    ''')
    stamp(8)
    a('s_branch L_done')
    a.label('L_T4')
    KR = 32; VR = 96; Q = 8; D = 160; ACC = 192; T = 208; PP = 240; OUT = 248
    a(f'''
    v_bfe_u32 v3, v0, 2, 2
    v_lshrrev_b32 v4, 4, v0
    v_and_b32 v5, 3, v0
    v_lshlrev_b32 v5, 4, v5
    v_lshl_add_u32 v1, v4, 6, v5
    v_lshl_add_u32 v1, v3, 8, v1
    v_lshlrev_b32 v2, 4, v0               ; V voffset
    s_lshr_b32 s26, s4, 4                 ; g_kv
    s_bfe_u32 s27, s4, 0x20002            ; b
    s_sub_u32 s28, s3, 4                  ; v
    s_lshl_b32 s25, s27, 3
    s_add_u32 s25, s25, s26
    s_lshl_b32 s25, s25, 20
    s_lshl_b32 s29, s6, 16
    s_add_u32 s25, s25, s29
    s_lshl_b32 s29, s28, 14
    s_add_u32 s25, s25, s29
    s_add_u32 s25, s25, {3072*256}        ; K/V soffset
    s_waitcnt lgkmcnt(0)
    ''')
    srd(16, PT['K'], 0x2000000)
    srd(20, PT['V'], 0x2000000)
    epoch_issue()
    perm_consts()
    a(f'''
    v_lshlrev_b32 v6, 10, v3
    s_lshl_b32 s96, s26, 12
    s_lshl_b32 s29, s6, 8
    s_add_u32 s96, s96, s29
    s_lshl_b32 s29, s27, 6
    s_add_u32 s96, s96, s29
    s_lshl_b32 s29, s28, 4
    s_add_u32 s96, s96, s29
    s_add_u32 s96, s96, {hex(AST)}
    v_lshrrev_b32 v7, 2, v0
    v_lshl_add_u32 v7, v7, 13, v5
    s_lshl_b32 s97, s26, 17
    s_lshl_b32 s29, s27, 11
    s_add_u32 s97, s97, s29
    s_lshl_b32 s29, s6, 9
    s_add_u32 s97, s97, s29
    s_lshl_b32 s29, s28, 7
    s_add_u32 s97, s97, s29
    s_add_u32 s97, s97, {hex(OA)}
    v_mov_b32 v3, 0xffffff00
    s_mov_b32 s98, {hex(CSC)}
    ''')
    epoch_finish()
    a('s_barrier                              ; A2')
    stamp(1)
    dp = P['kv_depth']
    for k in range(32):
        if k >= dp: a(f's_waitcnt vmcnt({dp-1})')
        if k < 16:
            a(f'buffer_load_dwordx4 {vr(KR+4*k)}, v1, {SW}, s25 offen offset:{(k&3)*1024} {NT}')
        else:
            a(f'buffer_load_dwordx4 {vr(VR+4*(k-16))}, v2, {S2}, s25 offen offset:{(k&3)*1024} {NT}')
        if (k & 3) == 3 and k != 31:
            a(f's_add_u32 s25, s25, 4096' if k != 15 else 's_sub_u32 s25, s25, 12288')
    stamp(2)
    a(f'''
    s_barrier                              ; A3
    ds_read_b128 {vr(Q)}, v2
    s_waitcnt vmcnt(16) lgkmcnt(0)
    ''')
    stamp(3)
    diag_mfma(KR, 16, Q, D, ACC)
    a(f'v_max3_f32 v12, v{ACC}, v{ACC+1}, v{ACC+2}')
    for e in range(3, 15, 2):
        a(f'v_max3_f32 v12, v12, v{ACC+e}, v{ACC+e+1}')
    a(f'v_max_f32 v12, v12, v{ACC+15}')
    allreduce_rows('v_max_f32', 12, 16)
    a('v_mul_f32 v12, s98, v12')
    for e in range(16):
        a(f'v_fma_f32 v{ACC+e}, v{ACC+e}, s98, -v12')
    for e in range(16):
        a(f'v_exp_f32 v{ACC+e}, v{ACC+e}')
    for p in range(8):
        a(f'v_cvt_pk_bf16_f32 v{PP+p}, v{ACC+2*p}, v{ACC+2*p+1}')
    for st in (8, 4, 2):
        for e in range(st):
            a(f'v_add_f32 v{ACC+e}, v{ACC+e}, v{ACC+st+e}')
    a(f'v_add_f32 v13, v{ACC}, v{ACC+1}')
    allreduce_rows('v_add_f32', 13, 16)
    a(f'''
    v_mov_b32 v14, s24
    v_mov_b32 v15, s24
    s_mov_b64 exec, 0x1111
    buffer_store_dwordx4 v[12:15], v6, {WS}, s96 offen sc1
    s_mov_b64 exec, -1
    ''')
    stamp(4)
    for u in range(2):
        a(f's_waitcnt vmcnt({9-8*u})')
        if u == 1: stamp(5)
        for jj in range(8):
            transpose_tile(T+4*jj, VR+32*u, jj)
            if jj >= 1:
                j = jj - 1
                a(f'v_mfma_f32_16x16x32_bf16 {vr(D+4*j)}, {vr(PP+4*u)}, {vr(T+4*j)}, {vr(D+4*j) if u else 0}')
        a(f'v_mfma_f32_16x16x32_bf16 {vr(D+28)}, {vr(PP+4*u)}, {vr(T+28)}, {vr(D+28) if u else 0}')
    tag_store(D, OUT, 3, 7, 's97', 's97', 0, 64)
    stamp(6)
    a('s_branch L_done')

    a.label('L_B')
    a('''
    s_cmp_ge_u32 s3, 4
    s_cbranch_scc1 L_U3
    ''')
    SA = 16; UV = 32; CF = 64; TR = 192; QB = 224
    a('v_lshlrev_b32 v1, 4, v0')
    for f in range(1, 8):
        a(f'v_xor_b32 v{1+f}, {f*32}, v1')
    a(f'''
    s_lshl_b32 s26, s3, 15
    s_lshl_b32 s25, s4, 17
    s_add_u32 s25, s25, s26
    s_waitcnt lgkmcnt(0)
    ''')
    srd(16, PT['ckv'], 0x1000000)
    srd(20, PT['w_uv'], 0x400000)
    epoch_issue()
    dp = P['c_depth']
    for k in range(32):
        if (k & 3) == 0:
            a(f's_mov_b32 m0, s26')
        if k >= dp: a(f's_waitcnt vmcnt({dp-1})')
        a(f'buffer_load_dwordx4 v{1+(k&7)}, {SW}, s25 offen offset:{(k&3)*1024} {NT} lds')
        if (k & 3) == 3 and k != 31:
            a('s_add_u32 s25, s25, 4096\ns_add_u32 s26, s26, 4096')
    stamp(1)
    a(f'''
    v_lshrrev_b32 v9, 4, v0               ; g
    v_and_b32 v10, 15, v0                 ; n
    v_lshlrev_b32 v11, 13, v9
    v_lshl_add_u32 v11, v10, 4, v11
    s_lshl_b32 s25, s6, 20
    s_lshl_b32 s26, s3, 15
    s_add_u32 s25, s25, s26
    s_lshl_b32 s26, s5, 8
    s_add_u32 s25, s25, s26
    ''')
    for e in range(8):
        a(f's_waitcnt vmcnt({dp-1})')
        a(f'buffer_load_dwordx4 {vr(UV+4*e)}, v11, {S2}, s25 offen {NT}')
        if e < 7: a(f's_add_u32 s25, s25, {16*8192}')
    epoch_finish()
    perm_consts()
    a(f'''
    s_mov_b32 s98, {hex(CSC)}
    v_and_b32 v5, 7, v0
    v_lshlrev_b32 v5, 1, v5
    v_xor_b32 v5, v5, v9
    v_lshlrev_b32 v5, 4, v5
    v_lshl_add_u32 v1, v10, 10, v5
    s_lshl_b32 s26, s3, 15
    v_add_u32 v1, s26, v1
    v_xor_b32 v2, 64, v1
    v_xor_b32 v3, 128, v1
    v_xor_b32 v4, 192, v1
    v_lshrrev_b32 v6, 2, v0
    v_and_b32 v7, 7, v6
    v_lshlrev_b32 v7, 5, v7
    v_lshl_add_u32 v5, v6, 10, v7
    v_and_b32 v7, 3, v0
    v_lshl_add_u32 v5, v7, 3, v5
    s_mul_i32 s27, s3, 33024
    v_add_u32 v5, s27, v5
    s_waitcnt vmcnt(8)
    ''')
    stamp(2)
    for kt in range(2):
        for ks in range(16):
            a(f'ds_read_b128 {vr(CF+8*ks+4*kt)}, v{1+(ks&3)} offset:{kt*16384+(ks>>2)*256}')
    def tr_reads(dst, step, jjs):
        for jj in jjs:
            t = 6 + (jj & 1)
            a(f'v_xor_b32 v{t}, {hex(jj*32 | step << 15)}, v5')
            a(f'ds_read_b64_tr_b16 {vr(dst+4*jj, 2)}, v{t}')
            a(f'ds_read_b64_tr_b16 {vr(dst+4*jj+2, 2)}, v{t} offset:16384')
    tr_reads(TR, 0, range(8))
    a(f'''
    s_sub_u32 s27, 0x20000, s26
    v_add_u32 v1, s27, v1
    v_add_u32 v2, s27, v2
    v_add_u32 v3, s27, v3
    v_add_u32 v4, s27, v4
    s_waitcnt lgkmcnt(0)
    ''')
    stamp(3)
    a('s_barrier                              ; B1')
    stamp(4)
    def q_read(ks):
        for ht in range(2):
            a(f'ds_read_b128 {vr(QB+8*(ks&3)+4*ht)}, v{1+(ks&3)} offset:{ht*16384+(ks>>2)*256}')
    for ks in range(3): q_read(ks)
    for ks in range(16):
        if ks + 3 < 16: q_read(ks + 3)
        a(f's_waitcnt lgkmcnt({2*min(3, 15-ks)})')
        for kt in range(2):
            for ht in range(2):
                d = SA + 8*ht + 4*kt
                a(f'v_mfma_f32_16x16x32_bf16 {vr(d)}, {vr(CF+8*ks+4*kt)}, {vr(QB+8*(ks&3)+4*ht)}, {vr(d) if ks else 0}')
    a(f'''
    v_lshlrev_b32 v2, 3, v10
    v_lshrrev_b32 v1, 5, v0
    v_lshl_add_u32 v1, v1, 2, v2
    s_mul_i32 s27, s3, 33024
    v_add_u32 v1, s27, v1
    v_add_u32 v3, 66048, v2
    ''')
    for ht in range(2):
        b = SA + 8*ht
        a(f'''v_max3_f32 v{12+ht}, v{b}, v{b+1}, v{b+2}
        v_max3_f32 v{12+ht}, v{12+ht}, v{b+3}, v{b+4}
        v_max3_f32 v{12+ht}, v{12+ht}, v{b+5}, v{b+6}
        v_max_f32 v{12+ht}, v{12+ht}, v{b+7}''')
    a(f'''
    v_permlane32_swap_b32 v12, v13
    v_max_f32 v12, v12, v13
    v_mov_b32 v13, v12
    v_permlane16_swap_b32 v12, v13
    v_max_f32 v12, v12, v13
    ds_write_b32 v1, v12
    s_waitcnt lgkmcnt(0)
    ''')
    stamp(5)
    E0 = 64
    a(f'''
    s_barrier                              ; B2
    ds_read_b64 {vr(E0, 2)}, v2
    ds_read_b64 {vr(E0+2, 2)}, v2 offset:33024
    ds_read_b64 {vr(E0+4, 2)}, v3
    ds_read_b64 {vr(E0+6, 2)}, v3 offset:33024
    s_lshl_b32 s27, s3, 11
    s_add_u32 s27, s27, 0x20000
    v_lshl_add_u32 v4, v0, 4, s27
    s_waitcnt lgkmcnt(0)
    v_max3_f32 v12, v{E0}, v{E0+2}, v{E0+4}
    v_max3_f32 v13, v{E0+1}, v{E0+3}, v{E0+5}
    v_max_f32 v12, v12, v{E0+6}
    v_max_f32 v13, v13, v{E0+7}
    v_mul_f32 v12, s98, v12
    v_mul_f32 v13, s98, v13
    ''')
    for e in range(16):
        a(f'v_fma_f32 v{SA+e}, v{SA+e}, s98, -v{12+(e>>3)}')
    for e in range(16):
        a(f'v_exp_f32 v{SA+e}, v{SA+e}')
    PF = 72
    for p in range(8):
        a(f'v_cvt_pk_bf16_f32 v{PF+p}, v{SA+2*p}, v{SA+2*p+1}')
    a(f'''
    ds_write_b128 v4, {vr(PF)}
    ds_write_b128 v4, {vr(PF+4)} offset:1024
    ''')
    for ht in range(2):
        b = SA + 8*ht
        for st in (4, 2):
            for e in range(st):
                a(f'v_add_f32 v{b+e}, v{b+e}, v{b+st+e}')
        a(f'v_add_f32 v{14+ht}, v{b}, v{b+1}')
    a(f'''
    v_permlane32_swap_b32 v14, v15
    v_add_f32 v14, v14, v15
    v_mov_b32 v15, v14
    v_permlane16_swap_b32 v14, v15
    v_add_f32 v14, v14, v15
    ds_write_b32 v1, v14 offset:128
    ''')
    OA0 = 160; OA1 = 224; TR2 = 104
    def oacc(ht, jj): return (OA0, OA1)[ht] + 4*jj
    def pv(step, jj, ht):
        tr = (TR, TR2)[step & 1]
        d = oacc(ht, jj)
        a(f'v_mfma_f32_16x16x32_bf16 {vr(d)}, {vr(PF+8*step+4*ht)}, {vr(tr+4*jj)}, {vr(d) if step else 0}')
    for jj in range(2):
        for ht in range(2): pv(0, jj, ht)
    a('s_waitcnt lgkmcnt(0)')
    stamp(6)
    a('s_barrier                              ; B3')
    for st in range(1, 4):
        a(f'v_xor_b32 v8, {st << 11}, v4')
        a(f'ds_read_b128 {vr(PF+8*st)}, v8')
        a(f'ds_read_b128 {vr(PF+8*st+4)}, v8 offset:1024')
    tr_reads(TR2, 1, range(0, 2))
    for jj in range(2, 8):
        for ht in range(2): pv(0, jj, ht)
        tr_reads(TR2, 1, [jj])
    for st in (1, 2):
        nxt = (TR, TR2)[(st+1) & 1]
        for jj in range(8):
            a('s_waitcnt lgkmcnt(14)')
            for ht in range(2): pv(st, jj, ht)
            tr_reads(nxt, st+1, [jj])
    a(f'''
    s_waitcnt lgkmcnt(8)
    ds_read_b64 {vr(E0, 2)}, v2 offset:128
    ds_read_b64 {vr(E0+2, 2)}, v2 offset:{33024+128}
    ds_read_b64 {vr(E0+4, 2)}, v3 offset:128
    ds_read_b64 {vr(E0+6, 2)}, v3 offset:{33024+128}
    v_lshlrev_b32 v11, 19, v9
    v_lshl_add_u32 v11, v10, 4, v11
    s_lshl_b32 s25, s3, 15
    s_lshl_b32 s26, s4, 8
    s_add_u32 s25, s25, s26
    s_add_u32 s25, s25, {hex(OP)}
    s_waitcnt lgkmcnt(4)
    ''')
    for ht in range(2):
        for jj in range(8): pv(3, jj, ht)
    PKO = 192
    for ht in range(2):
        for r in range(4):
            o = PKO + 16*ht + 4*r
            for p in range(4):
                a(f'v_cvt_pk_bf16_f32 v{o+p}, v{oacc(ht, 2*p)+r}, v{oacc(ht, 2*p+1)+r}')
            a(f'buffer_store_dwordx4 {vr(o)}, v11, {WS}, s25 offen sc1')
            if not (ht == 1 and r == 3):
                a(f's_add_u32 s25, s25, {131072 if r < 3 else 13*131072}')
    stamp(7)
    a(f'''
    s_waitcnt lgkmcnt(0)
    v_add_f32 v14, v{E0}, v{E0+2}
    v_add_f32 v15, v{E0+1}, v{E0+3}
    v_add_f32 v14, v14, v{E0+4}
    v_add_f32 v15, v15, v{E0+5}
    v_add_f32 v14, v14, v{E0+6}
    v_add_f32 v15, v15, v{E0+7}
    v_cmp_gt_u32 vcc, 16, v0
    v_lshlrev_b32 v8, 13, v0              ; head*8192
    v_mov_b32 v18, s24
    v_mov_b32 v19, s24
    v_cndmask_b32 v16, v13, v12, vcc
    v_cndmask_b32 v17, v15, v14, vcc
    s_lshl_b32 s25, s3, 11
    s_and_b32 s26, s4, 1
    s_lshl_b32 s26, s26, 10
    s_add_u32 s25, s25, s26
    s_bfe_u32 s26, s4, 0x20003
    s_lshl_b32 s26, s26, 8
    s_add_u32 s25, s25, s26
    s_lshr_b32 s26, s4, 5
    s_lshl_b32 s26, s26, 6
    s_add_u32 s25, s25, s26
    s_bfe_u32 s26, s4, 0x20001
    s_lshl_b32 s26, s26, 4
    s_add_u32 s25, s25, s26
    s_add_u32 s25, s25, {hex(OST)}
    s_waitcnt vmcnt(0)
    s_mov_b32 exec_hi, 0
    buffer_store_dwordx4 v[16:19], v8, {WS}, s25 offen sc1
    s_mov_b64 exec, -1
    ''')
    stamp(8)
    UT = 64; G = 96; T = 128; D = 160; WT = 20; XO = 24; OUT = 224
    for jj in range(8):
        transpose_tile(UT+4*jj, UV, jj)
    a(f'''
    v_lshlrev_b32 v1, 4, v0
    s_lshl_b32 s25, s4, 11
    s_add_u32 s25, s25, {hex(OST)}
    v_bfe_u32 v3, v0, 2, 2
    v_and_b32 v4, 3, v0
    v_lshlrev_b32 v4, 4, v4
    v_lshl_add_u32 v2, v3, 13, v4
    v_lshl_add_u32 v2, v9, 11, v2
    s_lshl_b32 s27, s4, 15
    s_lshl_b32 s26, s3, 6
    s_add_u32 s27, s27, s26
    s_add_u32 s27, s27, {hex(OP)}
    v_mul_u32_u24 v5, 20, v3
    v_add_lshl_u32 v5, v5, v9, 2
    v_mov_b32 v6, v2
    s_lshl_b32 s28, s5, 15
    s_lshl_b32 s26, s6, 9
    s_add_u32 s28, s28, s26
    s_lshl_b32 s26, s3, 7
    s_add_u32 s28, s28, s26
    s_add_u32 s28, s28, {hex(CTX)}
    v_mov_b32 v7, 0xffffff00
    s_mov_b32 s7, 0
    L_U2p:
    buffer_load_dwordx4 v[12:15], v1, {WS}, s25 offen sc1
    buffer_load_dwordx4 v[16:19], v1, {WS}, s25 offen offset:1024 sc1
    s_waitcnt vmcnt(0)
    v_xor_b32 v8, s24, v14
    v_bitop3_b32 v8, v15, s24, v8 bitop3:0xbe
    v_bitop3_b32 v8, v18, s24, v8 bitop3:0xbe
    v_bitop3_b32 v8, v19, s24, v8 bitop3:0xbe
    ''')
    poll_tail(8, 'L_U2p', mask=None)
    for k in range(8):
        a(f'buffer_load_dwordx4 {vr(G+4*k)}, v2, {WS}, s27 offen offset:{256*k} sc1')
    stamp(9)
    if P['wo_when'] == 'late': a('s_barrier                              ; B4')
    a('v_max_f32 v8, v12, v16')
    allreduce_quad('v_max_f32', 8)
    allreduce_rows('v_max_f32', 8, 14)
    a('''
    v_sub_f32 v12, v12, v8
    v_sub_f32 v16, v16, v8
    v_exp_f32 v12, v12
    v_exp_f32 v16, v16
    v_mul_f32 v8, v12, v13
    v_fmac_f32 v8, v16, v17
    ''')
    allreduce_quad('v_add_f32', 8)
    allreduce_rows('v_add_f32', 8, 14)
    a('''
    v_rcp_f32 v8, v8
    v_mul_f32 v12, v12, v8
    v_mul_f32 v16, v16, v8
    v_cvt_pk_bf16_f32 v12, v12, v16
    ''')
    for p in range(4):
        a(f'v_mov_b32_dpp v{WT+p}, v12 quad_perm:[{p},{p},{p},{p}] row_mask:0xf bank_mask:0xf')
    a('s_waitcnt vmcnt(0)')
    stamp(10)
    for jj in range(8):
        transpose_tile(T+4*jj, G, jj)
        if jj >= 1:
            a(f'v_mfma_f32_16x16x32_bf16 {vr(D+4*(jj-1))}, {vr(WT)}, {vr(T+4*(jj-1))}, 0')
    a(f'v_mfma_f32_16x16x32_bf16 {vr(D+28)}, {vr(WT)}, {vr(T+28)}, 0')
    for p in range(4):
        a(f'v_cvt_pk_bf16_f32 v{12+p}, v{D+8*p}, v{D+8*p+4}')
        a(f'ds_bpermute_b32 v{XO+p}, v5, v{12+p}')
    a('s_waitcnt lgkmcnt(0)')
    D2 = 192
    for jj in range(8):
        a(f'v_mfma_f32_16x16x32_bf16 {vr(D2+4*jj)}, {vr(XO)}, {vr(UT+4*jj)}, 0')
    tag_store(D2, OUT, 7, 6, 's28', 's28', 0, 64)
    stamp(11)
    a('s_branch L_done')
    a.label('L_U3')
    WR = 32; WT_ = 96; G = 160; D = 192; XO = 24
    a('v_lshlrev_b32 v1, 4, v0')
    for f in range(1, 8):
        a(f'v_xor_b32 v{1+f}, {f*32}, v1')
    a(f'''
    s_sub_u32 s28, s3, 4                  ; k = 0..3
    s_waitcnt lgkmcnt(0)
    s_cmp_lt_u32 s28, 2
    s_cselect_b32 s16, s{PT['wo']}, s{PT['w_o']}
    s_cselect_b32 s17, s{PT['wo']+1}, s{PT['w_o']+1}
    s_mov_b32 s18, 0x400000
    s_mov_b32 s19, 0x20000
    ''')
    epoch_issue()
    a(f'''
    s_lshr_b32 s25, s4, 4
    s_lshl_b32 s25, s25, 9
    s_lshl_b32 s26, s28, 7
    s_add_u32 s25, s25, s26
    s_add_u32 s25, s25, {hex(QFLAG)}
    s_add_u32 s96, s12, s25
    s_addc_u32 s97, s13, 0
    s_lshr_b32 s27, s4, 5
    s_lshl_b32 s27, s27, 15
    s_lshl_b32 s29, s28, 13
    s_add_u32 s27, s27, s29
    s_add_u32 s27, s27, {hex(QABS)}
    s_add_u32 s29, s29, 0x20000
    v_lshrrev_b32 v9, 4, v0
    v_and_b32 v10, 15, v0
    v_lshlrev_b32 v11, 11, v9
    v_lshl_add_u32 v11, v10, 4, v11
    s_lshl_b32 s99, s4, 15
    s_and_b32 s26, s28, 1
    s_lshl_b32 s26, s26, 9
    s_add_u32 s99, s99, s26
    ''')
    perm_consts()
    epoch_finish()
    a(f'''
    s_mov_b32 s25, s24
    s_mov_b32 s7, 0
    L_qf:
    s_load_dwordx16 s[64:79], s[96:97], 0 glc
    s_load_dwordx16 s[80:95], s[96:97], 64 glc
    s_add_u32 s7, s7, 1
    s_waitcnt lgkmcnt(0)
    s_xor_b64 s[100:101], s[64:65], s[24:25]
    ''')
    for k in range(1, 16):
        a(f's_xor_b64 s[{64+2*k}:{65+2*k}], s[{64+2*k}:{65+2*k}], s[24:25]')
        a(f's_or_b64 s[100:101], s[100:101], s[{64+2*k}:{65+2*k}]')
    a(f'''
    s_cbranch_scc0 L_qfd
    s_cmp_lt_u32 s7, {P['maxpoll']}
    s_cbranch_scc1 L_qf
    L_qfd:
    ''')
    stamp(1)
    for k in range(8):
        if (k & 3) == 0: a('s_mov_b32 m0, s29')
        a(f'buffer_load_dwordx4 v{1+k}, {WS}, s27 offen offset:{(k&3)*1024} sc1 lds')
        if k == 3: a('s_add_u32 s27, s27, 4096\ns_add_u32 s29, s29, 4096')
    def w_loads(t0, t1):
        for t in range(t0, t1):
            for zz in range(2):
                for uu in range(2):
                    a(f'buffer_load_dwordx4 {vr(WR+32*uu+4*(2*t+zz))}, v11, {SW}, s99 offen offset:{zz*1024+uu*256} {NT}')
            if t < 3: a('s_add_u32 s99, s99, 0x2000')
    if P['wo_when'] == 'early':
        w_loads(0, 2)
        a('s_waitcnt vmcnt(8)')
    else:
        a('s_waitcnt vmcnt(0)')
    stamp(2)
    a('s_barrier                              ; B1\ns_barrier                              ; B2\ns_barrier                              ; B3')
    if P['wo_when'] == 'early':
        w_loads(2, 4)
    else:
        a('s_barrier                              ; B4')
        w_loads(0, 4)
    a(f'''
    v_bfe_u32 v3, v0, 2, 2
    v_and_b32 v4, 3, v0
    v_lshlrev_b32 v4, 4, v4
    v_lshl_add_u32 v2, v3, 11, v4
    v_lshl_add_u32 v2, v9, 9, v2
    s_mov_b32 s26, {hex(CTX)}
    s_cmp_lt_u32 s28, 2
    s_cselect_b32 s27, {hex(OA)}, s26
    s_lshl_b32 s26, s4, 13
    s_add_u32 s27, s27, s26
    v_lshl_add_u32 v6, v3, 14, v4
    v_lshl_add_u32 v6, v9, 18, v6
    s_lshr_b32 s29, s28, 1
    s_lshl_b32 s29, s29, 20
    s_and_b32 s26, s28, 1
    s_lshl_b32 s26, s26, 17
    s_add_u32 s29, s29, s26
    s_lshl_b32 s26, s4, 6
    s_add_u32 s29, s29, s26
    s_add_u32 s29, s29, {hex(FIN)}
    s_add_u32 s96, s29, 0x2000
    s_add_u32 s97, s29, 0x10000
    s_add_u32 s98, s29, 0x12000
    v_mov_b32 v7, 0xffffff00
    v_mov_b32 v20, 1.0
    v_mov_b32 v21, 1.0
    v_mov_b32 v22, 1.0
    v_mov_b32 v23, 1.0
    s_waitcnt vmcnt(0)
    ''')
    stamp(3)
    for uu in range(2):
        for jj in range(8):
            transpose_tile(WT_+32*uu+4*jj, WR+32*uu, jj)
    a(f'''
    s_cmp_lt_u32 s28, 2
    s_cbranch_scc0 L_U3g
    s_lshl_b32 s25, s5, 10
    s_add_u32 s25, s25, {hex(AST)}
    s_mov_b32 s7, 0
    L_U4p:
    buffer_load_dwordx4 v[12:15], v1, {WS}, s25 offen sc1
    s_waitcnt vmcnt(0)
    v_xor_b32 v8, s24, v14
    v_bitop3_b32 v8, v15, s24, v8 bitop3:0xbe
    ''')
    poll_tail(8, 'L_U4p', mask=None)
    stamp(4)
    a('v_mov_b32 v8, v12')
    allreduce_quad('v_max_f32', 8)
    allreduce_rows('v_max_f32', 8, 14)
    a('''
    v_sub_f32 v12, v12, v8
    v_exp_f32 v12, v12
    v_mul_f32 v8, v12, v13
    ''')
    allreduce_quad('v_add_f32', 8)
    allreduce_rows('v_add_f32', 8, 14)
    a('''
    v_rcp_f32 v8, v8
    v_mul_f32 v12, v12, v8
    ''')
    for p in range(4):
        a(f'v_mov_b32_dpp v{20+p}, v12 quad_perm:[{p},{p},{p},{p}] row_mask:0xf bank_mask:0xf')
    a('L_U3g:\ns_mov_b32 s7, 0\nL_U3p:')
    for k in range(8):
        a(f'buffer_load_dwordx4 {vr(G+4*k)}, v2, {WS}, s27 offen offset:{64*k} sc1')
    AC = 12
    for k in range(8):
        a(f's_waitcnt vmcnt({7-k})')
        tag_check(8, range(G+4*k, G+4*k+4), first=(k == 0))
        for e in range(4):
            op = 'v_mul_f32' if k < 2 else 'v_fmac_f32'
            a(f'{op} v{AC+4*(k&1)+e}, v{20+(k>>1)}, v{G+4*k+e}')
    poll_tail(8, 'L_U3p')
    stamp(5)
    for q in range(4):
        a(f'v_permlane32_swap_b32 v{AC+q}, v{AC+4+q}')
    for q in range(4):
        a(f'v_add_f32 v{AC+q}, v{AC+q}, v{AC+4+q}')
    for q in range(2):
        a(f'v_permlane16_swap_b32 v{AC+q}, v{AC+2+q}')
    for q in range(2):
        a(f'v_add_f32 v{AC+q}, v{AC+q}, v{AC+2+q}')
    a(f'v_cvt_pk_bf16_f32 v{AC}, v{AC}, v{AC+1}')
    for p in range(4):
        a(f'v_mov_b32_dpp v{XO+p}, v{AC} quad_perm:[{p},{p},{p},{p}] row_mask:0xf bank_mask:0xf')
    for uu in range(2):
        for jj in range(8):
            a(f'v_mfma_f32_16x16x32_bf16 {vr(D+32*uu+4*jj)}, {vr(XO)}, {vr(WT_+32*uu+4*jj)}, 0')
    tag_store(D, 32, 7, 6, 's29', 's96')
    tag_store(D+32, 40, 7, 6, 's97', 's98')
    stamp(6)
    a.label('L_done')
    if diag:
        a(f'''
        s_waitcnt lgkmcnt(0)
        s_lshl_b32 s25, s2, 3
        s_add_u32 s25, s25, s3
        s_lshl_b32 s25, s25, 7
        s_add_u32 s25, s25, {hex(STAMP)}
        s_mov_b64 exec, 1
        v_mov_b32 v0, 0
        ''')
        for k in range(8):
            for e in range(4): a(f'v_mov_b32 v{4+4*(k&1)+e}, s{32+4*k+e}')
            a(f'buffer_store_dwordx4 {vr(4+4*(k&1))}, v0, {WS}, s25 offen offset:{16*k}')
    a.label('L_exit')
    a('s_endpgm')
    body, added = hazard.fix(a.text())
    return kernel_file([(NAME + '_kernel', body, 256, 102, 256)], [(NAME + '_kernel', 256, 512, 163840)]), added

if __name__ == '__main__':
    out = sys.argv[1]
    P = {}
    for kv in sys.argv[2:]:
        k, v = kv.split('=')
        if v in ('True', 'False'): v = (v == 'True')
        else:
            try: v = int(v, 0)
            except ValueError: pass
        P[k] = v
    txt, added = gen(P)
    open(out, 'w').write(txt)
    print(out, 'nop states added', added)
```

```python
import sys, struct, math
from asmlib import *
import hazard

DEF = dict(
    nt='nt',
    diag=False,
    ws0=0,
    maxpoll=20000,
    kv_depth=8,
    c_depth=8,
    wo_when='early',
    codepf=True,
    cal=None,
)

def f2u(x): return struct.unpack('<I', struct.pack('<f', x))[0]
def vr(a, n=4): return f'v[{a}:{a+n-1}]' if n > 1 else f'v{a}'

def gen(P):
    P = {**DEF, **P}
    NT = P['nt']
    W0 = P['ws0']
    EPOCH = W0
    QFLAG = W0 + 0x1000
    AST = W0 + 0x8000
    QABS = W0 + 0x20000
    QPB = W0 + 0x40000
    QPA = W0 + 0x80000
    OST = W0 + 0xC0000
    CTX = W0 + 0x100000
    OA = W0 + 0x200000
    FIN = W0 + 0x300000
    OP = W0 + 0x500000
    STAMP = 0x8000000
    CSC = f2u(math.log2(math.e) / math.sqrt(128.0))
    a = Asm()
    diag = P['diag']
    def stamp(k):
        if diag: a(f's_memrealtime s[{32+2*k}:{33+2*k}]')
    WS = 's[12:15]'; SW = 's[16:19]'; S2 = 's[20:23]'
    def srd(r, ptr, size):
        a(f's_mov_b32 s{r}, s{ptr}\ns_mov_b32 s{r+1}, s{ptr+1}\ns_mov_b32 s{r+2}, {hex(size)}\ns_mov_b32 s{r+3}, 0x20000')
    PT = dict(A_x=64, K=66, V=68, wq=70, wo=72, B_x=74, ckv=76, w_q=78, w_uk=80, w_uv=82, w_o=84, out=86)
    def epoch_issue():
        a(f's_load_dword s24, s[12:13], {hex(EPOCH)}' if EPOCH < (1 << 20) else f's_mov_b32 s25, {hex(EPOCH)}\ns_load_dword s24, s[12:13], s25')
    def epoch_finish():
        a('''s_waitcnt lgkmcnt(0)
        s_add_u32 s24, s24, 0x01010101
        s_and_b32 s8, s24, 0xff
        s_bfe_u32 s9, s24, 0x80008
        s_bfe_u32 s10, s24, 0x80010
        s_lshr_b32 s11, s24, 24''')
    def transpose_tile(dst, raw, jj):
        w = jj >> 1; sel = 's30' if (jj & 1) == 0 else 's31'
        for p in range(4):
            a(f'v_perm_b32 v{dst+p}, v{raw+(2*p+1)*4+w}, v{raw+(2*p)*4+w}, {sel}')
    def perm_consts():
        a('s_mov_b32 s30, 0x05040100\ns_mov_b32 s31, 0x07060302')
    def tag_check(acc, regs, first=True):
        for k, r in enumerate(regs):
            if first and k == 0:
                a(f'v_xor_b32 v{acc}, s{8+(k&3)}, v{r}')
            else:
                a(f'v_bitop3_b32 v{acc}, v{r}, s{8+(k&3)}, v{acc} bitop3:0xbe')
    def poll_tail(acc, lab, cnt='s7', mask=0xff):
        done = a.newlabel('Lpd')
        if mask is not None: a(f'v_and_b32 v{acc}, {hex(mask)}, v{acc}')
        a(f'''v_cmp_ne_u32 vcc, 0, v{acc}
        s_cbranch_vccz {done}
        s_add_u32 {cnt}, {cnt}, 1
        s_cmp_lt_u32 {cnt}, {P['maxpoll']}
        s_cbranch_scc1 {lab}
        {done}:''')
    def allreduce_rows(op, x, t):
        a(f'''v_mov_b32 v{t}, v{x}
        v_permlane32_swap_b32 v{x}, v{t}
        {op} v{x}, v{x}, v{t}
        v_mov_b32 v{t}, v{x}
        v_permlane16_swap_b32 v{x}, v{t}
        {op} v{x}, v{x}, v{t}''')
    def allreduce_quad(op, x):
        a(f'''{op}_dpp v{x}, v{x}, v{x} quad_perm:[1,0,3,2] row_mask:0xf bank_mask:0xf
        {op}_dpp v{x}, v{x}, v{x} quad_perm:[2,3,0,1] row_mask:0xf bank_mask:0xf''')
    def qgather(voff, soff, G, Q, scratch):
        lab = a.newlabel('Lqg')
        a(f's_mov_b32 s7, 0\ns_add_u32 s26, {soff}, 4096\n{lab}:')
        for k in range(8):
            a(f'buffer_load_dwordx4 {vr(G+4*k)}, v{voff}, {WS}, {soff if k < 4 else "s26"} offen offset:{(k&3)*1024} sc1')
        for k in range(8):
            a(f's_waitcnt vmcnt({7-k})')
            tag_check(scratch, range(G+4*k, G+4*k+4), first=(k == 0))
        poll_tail(scratch, lab)
        for jj in range(8):
            a(f'v_add_f32 v{G+jj}, v{G+jj}, v{G+8+jj}')
            a(f'v_add_f32 v{G+16+jj}, v{G+16+jj}, v{G+24+jj}')
        for jj in range(8):
            a(f'v_add_f32 v{G+jj}, v{G+jj}, v{G+16+jj}')
        for p in range(4):
            a(f'v_cvt_pk_bf16_f32 v{Q+p}, v{G+2*p}, v{G+2*p+1}')
    def diag_mfma(W, n, Q, D, ACC):
        for e0 in range(0, n, 8):
            for e in range(8):
                a(f'v_mfma_f32_16x16x32_bf16 {vr(D+4*e)}, {vr(W+4*(e0+e))}, {vr(Q)}, 0')
            for e in range(8):
                a(f'v_add_f32_dpp v{ACC+e0+e}, v{D+4*e+1}, v{D+4*e} quad_perm:[1,1,1,1] row_mask:0xf bank_mask:0xf')
            for r in (2, 3):
                for e in range(8):
                    a(f'v_add_f32_dpp v{ACC+e0+e}, v{D+4*e+r}, v{ACC+e0+e} quad_perm:[{r},{r},{r},{r}] row_mask:0xf bank_mask:0xf')
    def tag_store(D, OUT, vmask, voff, soff0, soff1, off0=0, off1=0):
        for half in range(2):
            for e in range(4):
                a(f'v_and_or_b32 v{OUT+4*half+e}, v{D+4*(4*half+e)}, v{vmask}, s{8+e}')
            a(f'buffer_store_dwordx4 {vr(OUT+4*half)}, v{voff}, {WS}, {(soff0, soff1)[half]} offen offset:{(off0, off1)[half]} sc1')

    stamp(0)
    a(f'''
    s_cmp_ge_u32 s2, 256
    s_cbranch_scc1 L_exit
    s_load_dwordx2 s[12:13], s[0:1], 104
    s_load_dwordx16 s[64:79], s[0:1], 0
    s_load_dwordx8 s[80:87], s[0:1], 64
    v_lshrrev_b32 v1, 6, v0
    v_and_b32 v0, 63, v0
    v_readfirstlane_b32 s3, v1
    s_and_b32 s4, s2, 7
    s_lshl_b32 s4, s4, 4
    s_bfe_u32 s5, s2, 0x40003
    s_add_u32 s4, s4, s5          ; i = xcd*16 + y
    s_lshr_b32 s5, s4, 2          ; h
    s_and_b32 s6, s4, 3           ; quarter
    s_mov_b32 s14, 0x10000000
    s_mov_b32 s15, 0x20000
    ''')
    if diag:
        for k in range(1, 16): a(f's_mov_b64 s[{32+2*k}:{33+2*k}], 0')
    a('''
    s_cmp_ge_u32 s2, 128
    s_cbranch_scc1 L_B
    s_cmp_ge_u32 s3, 4
    s_cbranch_scc1 L_T4
    s_bitcmp1_b32 s3, 0
    s_cbranch_scc1 L_T2
    ''')
    X = 4; WR = 32; T = 160; D = 192; OUT = 224
    a(f'''
    v_lshrrev_b32 v2, 4, v0
    v_and_b32 v3, 15, v0
    v_lshlrev_b32 v1, 18, v2
    v_lshl_add_u32 v1, v3, 4, v1          ; W voffset = g*32*8192 + n*16
    v_lshrrev_b32 v3, 2, v3
    v_lshlrev_b32 v2, 6, v2
    v_lshl_add_u32 v2, v3, 10, v2         ; x voffset = b*1024 + g*64
    s_lshl_b32 s25, s6, 20
    s_lshl_b32 s26, s5, 8
    s_add_u32 s25, s25, s26               ; W soffset
    s_lshl_b32 s26, s6, 8                 ; x soffset
    s_movk_i32 s27, 0x2000
    s_waitcnt lgkmcnt(0)
    s_cmp_eq_u32 s3, 0
    s_cselect_b32 s16, s{PT['w_q']}, s{PT['wq']}
    s_cselect_b32 s17, s{PT['w_q']+1}, s{PT['wq']+1}
    s_cselect_b32 s20, s{PT['B_x']}, s{PT['A_x']}
    s_cselect_b32 s21, s{PT['B_x']+1}, s{PT['A_x']+1}
    s_mov_b32 s18, 0x400000
    s_mov_b32 s19, 0x20000
    s_movk_i32 s22, 0x1000
    s_mov_b32 s23, 0x20000
    ''')
    epoch_issue()
    a('''
    s_cbranch_scc1 L_T1go
    s_waitcnt lgkmcnt(0)
    s_barrier
    L_T1go:
    ''')
    for u in range(4):
        a(f'buffer_load_dwordx4 {vr(X+4*u)}, v2, {S2}, s26 offen offset:{16*u}')
    for k in range(32):
        a(f'buffer_load_dwordx4 {vr(WR+4*k)}, v1, {SW}, s25 offen {NT}')
        if k < 31: a('s_add_u32 s25, s25, s27')
    stamp(1)
    perm_consts()
    epoch_finish()
    a(f'''
    v_mov_b32 v3, 0xffffff00
    v_lshlrev_b32 v2, 4, v0
    s_cmp_eq_u32 s3, 0
    s_cselect_b32 s25, {hex(QPB)}, {hex(QPA)}
    s_lshl_b32 s26, s4, 11
    s_add_u32 s25, s25, s26
    '''.replace(f's_cselect_b32 s25, {hex(QPB)}, {hex(QPA)}', f's_mov_b32 s28, {hex(QPA)}\ns_cselect_b32 s25, {hex(QPB)}, s28'))
    for u in range(4):
        a(f's_waitcnt vmcnt({24-8*u})')
        if u == 3: stamp(2)
        for jj in range(8):
            transpose_tile(T+4*jj, WR+32*u, jj)
            if jj >= 1:
                j = jj - 1
                a(f'v_mfma_f32_16x16x32_bf16 {vr(D+4*j)}, {vr(X+4*u)}, {vr(T+4*j)}, {vr(D+4*j) if u else 0}')
        a(f'v_mfma_f32_16x16x32_bf16 {vr(D+28)}, {vr(X+4*u)}, {vr(T+28)}, {vr(D+28) if u else 0}')
    tag_store(D, OUT, 3, 2, 's25', 's25', 0, 1024)
    stamp(3)
    a('''
    s_cmp_eq_u32 s3, 0
    s_cbranch_scc0 L_T3b
    s_barrier                              ; A2
    s_barrier                              ; A3
    s_branch L_T5
    L_T3b:
    ''')
    a(f'''
    v_bfe_u32 v1, v0, 2, 2
    v_lshlrev_b32 v1, 13, v1              ; hh*8192
    v_lshrrev_b32 v4, 4, v0
    v_lshl_add_u32 v1, v4, 6, v1
    v_and_b32 v4, 3, v0
    v_lshl_add_u32 v1, v4, 4, v1
    s_lshr_b32 s25, s4, 4                 ; g_kv
    s_lshl_b32 s25, s25, 15
    s_bfe_u32 s26, s4, 0x20002            ; b
    s_lshl_b32 s26, s26, 8
    s_add_u32 s25, s25, s26
    s_add_u32 s25, s25, {hex(QPA)}
    ''')
    qgather(1, 's25', 32, 8, 5)
    a('''
    ds_write_b128 v2, v[8:11]
    s_waitcnt lgkmcnt(0)
    ''')
    stamp(4)
    a('''
    s_barrier                              ; A3
    s_branch L_done
    ''')
    a.label('L_T2')
    WR = 32; G = 96; Q = 8; D = 128; ACC = 160; PK = 176
    a(f'''
    v_bfe_u32 v3, v0, 2, 2                ; rho / b
    v_lshrrev_b32 v4, 4, v0               ; g
    v_and_b32 v5, 3, v0
    v_lshlrev_b32 v5, 4, v5
    v_lshl_add_u32 v5, v4, 6, v5          ; g*64 + k*16
    v_lshl_add_u32 v1, v3, 18, v5         ; W voffset
    v_lshl_add_u32 v2, v3, 8, v5
    s_lshl_b32 s25, s6, 20
    s_lshl_b32 s26, s5, 8
    s_add_u32 s25, s25, s26
    s_lshr_b32 s28, s3, 1                 ; z
    s_lshl_b32 s26, s28, 17
    s_add_u32 s25, s25, s26
    s_movk_i32 s27, 0x2000
    s_waitcnt lgkmcnt(0)
    ''')
    srd(16, PT['w_uk'], 0x400000)
    epoch_issue()
    for k in range(16):
        a(f'buffer_load_dwordx4 {vr(WR+4*k)}, v1, {SW}, s25 offen {NT}')
        if k < 15: a('s_add_u32 s25, s25, s27')
    if P['codepf']:
        a(f'''
        s_getpc_b64 s[96:97]
        L_pc1:
        s_sub_u32 s96, s96, L_pc1-{NAME}_kernel
        s_subb_u32 s97, s97, 0
        s_and_b32 s26, s4, 15
        s_lshl_b32 s26, s26, 10
        s_lshl_b32 s29, s28, 9
        s_add_u32 s26, s26, s29
        v_lshl_add_u32 v6, v0, 3, s26
        v_min_u32 v6, L_exit-{NAME}_kernel-8, v6
        global_load_dwordx2 v[12:13], v6, s[96:97]
        ''')
    stamp(1)
    epoch_finish()
    a(f'''
    s_lshl_b32 s25, s5, 13
    s_add_u32 s25, s25, {hex(QPB)}
    v_lshlrev_b32 v6, 15, v3
    v_lshl_add_u32 v6, v4, 6, v6
    s_lshl_b32 s29, s4, 8
    s_lshl_b32 s28, s28, 5
    s_add_u32 s29, s29, s28
    s_add_u32 s29, s29, {hex(QABS)}
    s_waitcnt vmcnt(8)
    ''')
    stamp(2)
    qgather(2, 's25', G, Q, 7)
    stamp(3)
    diag_mfma(WR, 16, Q, D, ACC)
    for p in range(8):
        a(f'v_cvt_pk_bf16_f32 v{PK+p}, v{ACC+2*p}, v{ACC+2*p+1}')
    a(f'''
    s_mov_b32 exec_lo, 0x11111111
    s_mov_b32 exec_hi, 0x11111111
    buffer_store_dwordx4 {vr(PK)}, v6, {WS}, s29 offen sc1
    buffer_store_dwordx4 {vr(PK+4)}, v6, {WS}, s29 offen offset:16 sc1
    s_mov_b64 exec, -1
    ''')
    stamp(4)
    a(f'''
    v_lshlrev_b32 v6, 9, v0
    v_mov_b32 v7, s24
    s_lshl_b32 s29, s4, 2
    s_add_u32 s29, s29, {hex(QFLAG)}
    s_waitcnt vmcnt(0)
    s_barrier                              ; A2
    s_cmp_eq_u32 s3, 1
    s_cbranch_scc0 L_done
    s_mov_b64 exec, 0xff
    buffer_store_dword v7, v6, {WS}, s29 offen sc1
    s_mov_b64 exec, -1
    ''')
    stamp(5)
    a('s_barrier                              ; A3')
    a.label('L_T5')
    G = 32
    srd(20, PT['out'], 8192)
    a(f'''
    v_lshlrev_b32 v2, 4, v0
    s_lshl_b32 s25, s4, 14
    s_lshl_b32 s26, s3, 13
    s_add_u32 s25, s25, s26
    s_add_u32 s25, s25, {hex(FIN)}
    s_add_u32 s26, s25, 4096
    v_and_b32 v3, 3, v0
    v_lshrrev_b32 v4, 4, v0
    v_lshl_add_u32 v3, v3, 3, v4
    v_lshlrev_b32 v3, 1, v3
    s_bfe_u32 s27, s4, 0x20004
    s_lshl_b32 s27, s27, 11
    s_lshr_b32 s28, s4, 6
    s_lshl_b32 s28, s28, 10
    s_add_u32 s27, s27, s28
    s_and_b32 s28, s4, 15
    s_lshl_b32 s28, s28, 6
    s_add_u32 s27, s27, s28
    s_lshl_b32 s28, s3, 3
    s_add_u32 s27, s27, s28
    s_mov_b32 s7, 0
    s_barrier
    ''')
    stamp(6)
    a.label('L_T5p')
    for k in range(8):
        a(f'buffer_load_dwordx4 {vr(G+4*k)}, v2, {WS}, {"s25" if k < 4 else "s26"} offen offset:{(k&3)*1024} sc1')
    for k in range(8):
        a(f's_waitcnt vmcnt({7-k})')
        tag_check(5, range(G+4*k, G+4*k+4), first=(k == 0))
    poll_tail(5, 'L_T5p')
    stamp(7)
    for st in (16, 8, 4):
        for e in range(st):
            a(f'v_add_f32 v{G+e}, v{G+e}, v{G+st+e}')
    a(f'''
    v_permlane32_swap_b32 v{G}, v{G+2}
    v_permlane32_swap_b32 v{G+1}, v{G+3}
    v_add_f32 v{G}, v{G}, v{G+2}
    v_add_f32 v{G+1}, v{G+1}, v{G+3}
    v_permlane16_swap_b32 v{G}, v{G+1}
    v_add_f32 v{G}, v{G}, v{G+1}
    v_add_f32_dpp v{G}, v{G}, v{G} row_ror:8 row_mask:0xf bank_mask:0xf
    v_add_f32_dpp v{G}, v{G}, v{G} row_ror:4 row_mask:0xf bank_mask:0xf
    v_cvt_pk_bf16_f32 v{G}, v{G}, v{G}
    s_mov_b32 exec_lo, 0x000f000f
    s_mov_b32 exec_hi, 0x000f000f
    buffer_store_short v{G}, v3, {S2}, s27 offen
    s_or_b32 s28, s4, s3
    s_cmp_eq_u32 s28, 0
    s_cbranch_scc0 L_T5e
    s_mov_b64 exec, 1
    v_mov_b32 v6, s24
    s_mov_b32 s25, {hex(EPOCH)}
    buffer_store_dword v6, v2, {WS}, s25 offen
    L_T5e:
    s_mov_b64 exec, -1
    ''')
    stamp(8)
    a('s_branch L_done')
    a.label('L_T4')
    KR = 32; VR = 96; Q = 8; D = 160; ACC = 192; T = 208; PP = 240; OUT = 248
    a(f'''
    v_bfe_u32 v3, v0, 2, 2
    v_lshrrev_b32 v4, 4, v0
    v_and_b32 v5, 3, v0
    v_lshlrev_b32 v5, 4, v5
    v_lshl_add_u32 v1, v4, 6, v5
    v_lshl_add_u32 v1, v3, 8, v1
    v_lshlrev_b32 v2, 4, v0               ; V voffset
    s_lshr_b32 s26, s4, 4                 ; g_kv
    s_bfe_u32 s27, s4, 0x20002            ; b
    s_sub_u32 s28, s3, 4                  ; v
    s_lshl_b32 s25, s27, 3
    s_add_u32 s25, s25, s26
    s_lshl_b32 s25, s25, 20
    s_lshl_b32 s29, s6, 16
    s_add_u32 s25, s25, s29
    s_lshl_b32 s29, s28, 14
    s_add_u32 s25, s25, s29
    s_add_u32 s25, s25, {3072*256}        ; K/V soffset
    s_waitcnt lgkmcnt(0)
    ''')
    srd(16, PT['K'], 0x2000000)
    srd(20, PT['V'], 0x2000000)
    epoch_issue()
    perm_consts()
    a(f'''
    v_lshlrev_b32 v6, 10, v3
    s_lshl_b32 s96, s26, 12
    s_lshl_b32 s29, s6, 8
    s_add_u32 s96, s96, s29
    s_lshl_b32 s29, s27, 6
    s_add_u32 s96, s96, s29
    s_lshl_b32 s29, s28, 4
    s_add_u32 s96, s96, s29
    s_add_u32 s96, s96, {hex(AST)}
    v_lshrrev_b32 v7, 2, v0
    v_lshl_add_u32 v7, v7, 13, v5
    s_lshl_b32 s97, s26, 17
    s_lshl_b32 s29, s27, 11
    s_add_u32 s97, s97, s29
    s_lshl_b32 s29, s6, 9
    s_add_u32 s97, s97, s29
    s_lshl_b32 s29, s28, 7
    s_add_u32 s97, s97, s29
    s_add_u32 s97, s97, {hex(OA)}
    v_mov_b32 v3, 0xffffff00
    s_mov_b32 s98, {hex(CSC)}
    ''')
    epoch_finish()
    a('s_barrier                              ; A2')
    stamp(1)
    dp = P['kv_depth']
    for k in range(32):
        if k >= dp: a(f's_waitcnt vmcnt({dp-1})')
        if k < 16:
            a(f'buffer_load_dwordx4 {vr(KR+4*k)}, v1, {SW}, s25 offen offset:{(k&3)*1024} {NT}')
        else:
            a(f'buffer_load_dwordx4 {vr(VR+4*(k-16))}, v2, {S2}, s25 offen offset:{(k&3)*1024} {NT}')
        if (k & 3) == 3 and k != 31:
            a(f's_add_u32 s25, s25, 4096' if k != 15 else 's_sub_u32 s25, s25, 12288')
    stamp(2)
    a(f'''
    s_barrier                              ; A3
    ds_read_b128 {vr(Q)}, v2
    s_waitcnt vmcnt(16) lgkmcnt(0)
    ''')
    stamp(3)
    diag_mfma(KR, 16, Q, D, ACC)
    a(f'v_max3_f32 v12, v{ACC}, v{ACC+1}, v{ACC+2}')
    for e in range(3, 15, 2):
        a(f'v_max3_f32 v12, v12, v{ACC+e}, v{ACC+e+1}')
    a(f'v_max_f32 v12, v12, v{ACC+15}')
    allreduce_rows('v_max_f32', 12, 16)
    a('v_mul_f32 v12, s98, v12')
    for e in range(16):
        a(f'v_fma_f32 v{ACC+e}, v{ACC+e}, s98, -v12')
    for e in range(16):
        a(f'v_exp_f32 v{ACC+e}, v{ACC+e}')
    for p in range(8):
        a(f'v_cvt_pk_bf16_f32 v{PP+p}, v{ACC+2*p}, v{ACC+2*p+1}')
    for st in (8, 4, 2):
        for e in range(st):
            a(f'v_add_f32 v{ACC+e}, v{ACC+e}, v{ACC+st+e}')
    a(f'v_add_f32 v13, v{ACC}, v{ACC+1}')
    allreduce_rows('v_add_f32', 13, 16)
    a(f'''
    v_mov_b32 v14, s24
    v_mov_b32 v15, s24
    s_mov_b64 exec, 0x1111
    buffer_store_dwordx4 v[12:15], v6, {WS}, s96 offen sc1
    s_mov_b64 exec, -1
    ''')
    stamp(4)
    for u in range(2):
        a(f's_waitcnt vmcnt({9-8*u})')
        if u == 1: stamp(5)
        for jj in range(8):
            transpose_tile(T+4*jj, VR+32*u, jj)
            if jj >= 1:
                j = jj - 1
                a(f'v_mfma_f32_16x16x32_bf16 {vr(D+4*j)}, {vr(PP+4*u)}, {vr(T+4*j)}, {vr(D+4*j) if u else 0}')
        a(f'v_mfma_f32_16x16x32_bf16 {vr(D+28)}, {vr(PP+4*u)}, {vr(T+28)}, {vr(D+28) if u else 0}')
    tag_store(D, OUT, 3, 7, 's97', 's97', 0, 64)
    stamp(6)
    a('s_branch L_done')

    a.label('L_B')
    a('''
    s_cmp_ge_u32 s3, 4
    s_cbranch_scc1 L_U3
    ''')
    SA = 16; UV = 32; CF = 64; TR = 192; QB = 224
    a('v_lshlrev_b32 v1, 4, v0')
    for f in range(1, 8):
        a(f'v_xor_b32 v{1+f}, {f*32}, v1')
    a(f'''
    s_lshl_b32 s26, s3, 15
    s_lshl_b32 s25, s4, 17
    s_add_u32 s25, s25, s26
    s_waitcnt lgkmcnt(0)
    ''')
    srd(16, PT['ckv'], 0x1000000)
    srd(20, PT['w_uv'], 0x400000)
    epoch_issue()
    dp = P['c_depth']
    for k in range(32):
        if (k & 3) == 0:
            a(f's_mov_b32 m0, s26')
        if k >= dp: a(f's_waitcnt vmcnt({dp-1})')
        a(f'buffer_load_dwordx4 v{1+(k&7)}, {SW}, s25 offen offset:{(k&3)*1024} {NT} lds')
        if (k & 3) == 3 and k != 31:
            a('s_add_u32 s25, s25, 4096\ns_add_u32 s26, s26, 4096')
    stamp(1)
    a(f'''
    v_lshrrev_b32 v9, 4, v0               ; g
    v_and_b32 v10, 15, v0                 ; n
    v_lshlrev_b32 v11, 13, v9
    v_lshl_add_u32 v11, v10, 4, v11
    s_lshl_b32 s25, s6, 20
    s_lshl_b32 s26, s3, 15
    s_add_u32 s25, s25, s26
    s_lshl_b32 s26, s5, 8
    s_add_u32 s25, s25, s26
    ''')
    for e in range(8):
        a(f's_waitcnt vmcnt({dp-1})')
        a(f'buffer_load_dwordx4 {vr(UV+4*e)}, v11, {S2}, s25 offen {NT}')
        if e < 7: a(f's_add_u32 s25, s25, {16*8192}')
    epoch_finish()
    perm_consts()
    a(f'''
    s_mov_b32 s98, {hex(CSC)}
    v_and_b32 v5, 7, v0
    v_lshlrev_b32 v5, 1, v5
    v_xor_b32 v5, v5, v9
    v_lshlrev_b32 v5, 4, v5
    v_lshl_add_u32 v1, v10, 10, v5
    s_lshl_b32 s26, s3, 15
    v_add_u32 v1, s26, v1
    v_xor_b32 v2, 64, v1
    v_xor_b32 v3, 128, v1
    v_xor_b32 v4, 192, v1
    v_lshrrev_b32 v6, 2, v0
    v_and_b32 v7, 7, v6
    v_lshlrev_b32 v7, 5, v7
    v_lshl_add_u32 v5, v6, 10, v7
    v_and_b32 v7, 3, v0
    v_lshl_add_u32 v5, v7, 3, v5
    s_mul_i32 s27, s3, 33024
    v_add_u32 v5, s27, v5
    s_waitcnt vmcnt(8)
    ''')
    stamp(2)
    for kt in range(2):
        for ks in range(16):
            a(f'ds_read_b128 {vr(CF+8*ks+4*kt)}, v{1+(ks&3)} offset:{kt*16384+(ks>>2)*256}')
    def tr_reads(dst, step, jjs):
        for jj in jjs:
            t = 6 + (jj & 1)
            a(f'v_xor_b32 v{t}, {hex(jj*32 | step << 15)}, v5')
            a(f'ds_read_b64_tr_b16 {vr(dst+4*jj, 2)}, v{t}')
            a(f'ds_read_b64_tr_b16 {vr(dst+4*jj+2, 2)}, v{t} offset:16384')
    tr_reads(TR, 0, range(8))
    a(f'''
    s_sub_u32 s27, 0x20000, s26
    v_add_u32 v1, s27, v1
    v_add_u32 v2, s27, v2
    v_add_u32 v3, s27, v3
    v_add_u32 v4, s27, v4
    s_waitcnt lgkmcnt(0)
    ''')
    stamp(3)
    a('s_barrier                              ; B1')
    stamp(4)
    def q_read(ks):
        for ht in range(2):
            a(f'ds_read_b128 {vr(QB+8*(ks&3)+4*ht)}, v{1+(ks&3)} offset:{ht*16384+(ks>>2)*256}')
    for ks in range(3): q_read(ks)
    for ks in range(16):
        if ks + 3 < 16: q_read(ks + 3)
        a(f's_waitcnt lgkmcnt({2*min(3, 15-ks)})')
        for kt in range(2):
            for ht in range(2):
                d = SA + 8*ht + 4*kt
                a(f'v_mfma_f32_16x16x32_bf16 {vr(d)}, {vr(CF+8*ks+4*kt)}, {vr(QB+8*(ks&3)+4*ht)}, {vr(d) if ks else 0}')
    a(f'''
    v_lshlrev_b32 v2, 3, v10
    v_lshrrev_b32 v1, 5, v0
    v_lshl_add_u32 v1, v1, 2, v2
    s_mul_i32 s27, s3, 33024
    v_add_u32 v1, s27, v1
    v_add_u32 v3, 66048, v2
    ''')
    for ht in range(2):
        b = SA + 8*ht
        a(f'''v_max3_f32 v{12+ht}, v{b}, v{b+1}, v{b+2}
        v_max3_f32 v{12+ht}, v{12+ht}, v{b+3}, v{b+4}
        v_max3_f32 v{12+ht}, v{12+ht}, v{b+5}, v{b+6}
        v_max_f32 v{12+ht}, v{12+ht}, v{b+7}''')
    a(f'''
    v_permlane32_swap_b32 v12, v13
    v_max_f32 v12, v12, v13
    v_mov_b32 v13, v12
    v_permlane16_swap_b32 v12, v13
    v_max_f32 v12, v12, v13
    ds_write_b32 v1, v12
    s_waitcnt lgkmcnt(0)
    ''')
    stamp(5)
    E0 = 64
    a(f'''
    s_barrier                              ; B2
    ds_read_b64 {vr(E0, 2)}, v2
    ds_read_b64 {vr(E0+2, 2)}, v2 offset:33024
    ds_read_b64 {vr(E0+4, 2)}, v3
    ds_read_b64 {vr(E0+6, 2)}, v3 offset:33024
    s_lshl_b32 s27, s3, 11
    s_add_u32 s27, s27, 0x20000
    v_lshl_add_u32 v4, v0, 4, s27
    s_waitcnt lgkmcnt(0)
    v_max3_f32 v12, v{E0}, v{E0+2}, v{E0+4}
    v_max3_f32 v13, v{E0+1}, v{E0+3}, v{E0+5}
    v_max_f32 v12, v12, v{E0+6}
    v_max_f32 v13, v13, v{E0+7}
    v_mul_f32 v12, s98, v12
    v_mul_f32 v13, s98, v13
    ''')
    for e in range(16):
        a(f'v_fma_f32 v{SA+e}, v{SA+e}, s98, -v{12+(e>>3)}')
    for e in range(16):
        a(f'v_exp_f32 v{SA+e}, v{SA+e}')
    PF = 72
    for p in range(8):
        a(f'v_cvt_pk_bf16_f32 v{PF+p}, v{SA+2*p}, v{SA+2*p+1}')
    a(f'''
    ds_write_b128 v4, {vr(PF)}
    ds_write_b128 v4, {vr(PF+4)} offset:1024
    ''')
    for ht in range(2):
        b = SA + 8*ht
        for st in (4, 2):
            for e in range(st):
                a(f'v_add_f32 v{b+e}, v{b+e}, v{b+st+e}')
        a(f'v_add_f32 v{14+ht}, v{b}, v{b+1}')
    a(f'''
    v_permlane32_swap_b32 v14, v15
    v_add_f32 v14, v14, v15
    v_mov_b32 v15, v14
    v_permlane16_swap_b32 v14, v15
    v_add_f32 v14, v14, v15
    ds_write_b32 v1, v14 offset:128
    ''')
    OA0 = 160; OA1 = 224; TR2 = 104
    def oacc(ht, jj): return (OA0, OA1)[ht] + 4*jj
    def pv(step, jj, ht):
        tr = (TR, TR2)[step & 1]
        d = oacc(ht, jj)
        a(f'v_mfma_f32_16x16x32_bf16 {vr(d)}, {vr(PF+8*step+4*ht)}, {vr(tr+4*jj)}, {vr(d) if step else 0}')
    for jj in range(2):
        for ht in range(2): pv(0, jj, ht)
    a('s_waitcnt lgkmcnt(0)')
    stamp(6)
    a('s_barrier                              ; B3')
    for st in range(1, 4):
        a(f'v_xor_b32 v8, {st << 11}, v4')
        a(f'ds_read_b128 {vr(PF+8*st)}, v8')
        a(f'ds_read_b128 {vr(PF+8*st+4)}, v8 offset:1024')
    tr_reads(TR2, 1, range(0, 2))
    for jj in range(2, 8):
        for ht in range(2): pv(0, jj, ht)
        tr_reads(TR2, 1, [jj])
    for st in (1, 2):
        nxt = (TR, TR2)[(st+1) & 1]
        for jj in range(8):
            a('s_waitcnt lgkmcnt(14)')
            for ht in range(2): pv(st, jj, ht)
            tr_reads(nxt, st+1, [jj])
    a(f'''
    s_waitcnt lgkmcnt(8)
    ds_read_b64 {vr(E0, 2)}, v2 offset:128
    ds_read_b64 {vr(E0+2, 2)}, v2 offset:{33024+128}
    ds_read_b64 {vr(E0+4, 2)}, v3 offset:128
    ds_read_b64 {vr(E0+6, 2)}, v3 offset:{33024+128}
    v_lshlrev_b32 v11, 19, v9
    v_lshl_add_u32 v11, v10, 4, v11
    s_lshl_b32 s25, s3, 15
    s_lshl_b32 s26, s4, 8
    s_add_u32 s25, s25, s26
    s_add_u32 s25, s25, {hex(OP)}
    s_waitcnt lgkmcnt(4)
    ''')
    for ht in range(2):
        for jj in range(8): pv(3, jj, ht)
    PKO = 192
    for ht in range(2):
        for r in range(4):
            o = PKO + 16*ht + 4*r
            for p in range(4):
                a(f'v_cvt_pk_bf16_f32 v{o+p}, v{oacc(ht, 2*p)+r}, v{oacc(ht, 2*p+1)+r}')
            a(f'buffer_store_dwordx4 {vr(o)}, v11, {WS}, s25 offen sc1')
            if not (ht == 1 and r == 3):
                a(f's_add_u32 s25, s25, {131072 if r < 3 else 13*131072}')
    stamp(7)
    a(f'''
    s_waitcnt lgkmcnt(0)
    v_add_f32 v14, v{E0}, v{E0+2}
    v_add_f32 v15, v{E0+1}, v{E0+3}
    v_add_f32 v14, v14, v{E0+4}
    v_add_f32 v15, v15, v{E0+5}
    v_add_f32 v14, v14, v{E0+6}
    v_add_f32 v15, v15, v{E0+7}
    v_cmp_gt_u32 vcc, 16, v0
    v_lshlrev_b32 v8, 13, v0              ; head*8192
    v_mov_b32 v18, s24
    v_mov_b32 v19, s24
    v_cndmask_b32 v16, v13, v12, vcc
    v_cndmask_b32 v17, v15, v14, vcc
    s_lshl_b32 s25, s3, 11
    s_and_b32 s26, s4, 1
    s_lshl_b32 s26, s26, 10
    s_add_u32 s25, s25, s26
    s_bfe_u32 s26, s4, 0x20003
    s_lshl_b32 s26, s26, 8
    s_add_u32 s25, s25, s26
    s_lshr_b32 s26, s4, 5
    s_lshl_b32 s26, s26, 6
    s_add_u32 s25, s25, s26
    s_bfe_u32 s26, s4, 0x20001
    s_lshl_b32 s26, s26, 4
    s_add_u32 s25, s25, s26
    s_add_u32 s25, s25, {hex(OST)}
    s_waitcnt vmcnt(0)
    s_mov_b32 exec_hi, 0
    buffer_store_dwordx4 v[16:19], v8, {WS}, s25 offen sc1
    s_mov_b64 exec, -1
    ''')
    stamp(8)
    UT = 64; G = 96; T = 128; D = 160; WT = 20; XO = 24; OUT = 224
    for jj in range(8):
        transpose_tile(UT+4*jj, UV, jj)
    a(f'''
    v_lshlrev_b32 v1, 4, v0
    s_lshl_b32 s25, s4, 11
    s_add_u32 s25, s25, {hex(OST)}
    v_bfe_u32 v3, v0, 2, 2
    v_and_b32 v4, 3, v0
    v_lshlrev_b32 v4, 4, v4
    v_lshl_add_u32 v2, v3, 13, v4
    v_lshl_add_u32 v2, v9, 11, v2
    s_lshl_b32 s27, s4, 15
    s_lshl_b32 s26, s3, 6
    s_add_u32 s27, s27, s26
    s_add_u32 s27, s27, {hex(OP)}
    v_mul_u32_u24 v5, 20, v3
    v_add_lshl_u32 v5, v5, v9, 2
    v_mov_b32 v6, v2
    s_lshl_b32 s28, s5, 15
    s_lshl_b32 s26, s6, 9
    s_add_u32 s28, s28, s26
    s_lshl_b32 s26, s3, 7
    s_add_u32 s28, s28, s26
    s_add_u32 s28, s28, {hex(CTX)}
    v_mov_b32 v7, 0xffffff00
    s_mov_b32 s7, 0
    L_U2p:
    buffer_load_dwordx4 v[12:15], v1, {WS}, s25 offen sc1
    buffer_load_dwordx4 v[16:19], v1, {WS}, s25 offen offset:1024 sc1
    s_waitcnt vmcnt(0)
    v_xor_b32 v8, s24, v14
    v_bitop3_b32 v8, v15, s24, v8 bitop3:0xbe
    v_bitop3_b32 v8, v18, s24, v8 bitop3:0xbe
    v_bitop3_b32 v8, v19, s24, v8 bitop3:0xbe
    ''')
    poll_tail(8, 'L_U2p', mask=None)
    for k in range(8):
        a(f'buffer_load_dwordx4 {vr(G+4*k)}, v2, {WS}, s27 offen offset:{256*k} sc1')
    stamp(9)
    if P['wo_when'] == 'late': a('s_barrier                              ; B4')
    a('v_max_f32 v8, v12, v16')
    allreduce_quad('v_max_f32', 8)
    allreduce_rows('v_max_f32', 8, 14)
    a('''
    v_sub_f32 v12, v12, v8
    v_sub_f32 v16, v16, v8
    v_exp_f32 v12, v12
    v_exp_f32 v16, v16
    v_mul_f32 v8, v12, v13
    v_fmac_f32 v8, v16, v17
    ''')
    allreduce_quad('v_add_f32', 8)
    allreduce_rows('v_add_f32', 8, 14)
    a('''
    v_rcp_f32 v8, v8
    v_mul_f32 v12, v12, v8
    v_mul_f32 v16, v16, v8
    v_cvt_pk_bf16_f32 v12, v12, v16
    ''')
    for p in range(4):
        a(f'v_mov_b32_dpp v{WT+p}, v12 quad_perm:[{p},{p},{p},{p}] row_mask:0xf bank_mask:0xf')
    a('s_waitcnt vmcnt(0)')
    stamp(10)
    for jj in range(8):
        transpose_tile(T+4*jj, G, jj)
        if jj >= 1:
            a(f'v_mfma_f32_16x16x32_bf16 {vr(D+4*(jj-1))}, {vr(WT)}, {vr(T+4*(jj-1))}, 0')
    a(f'v_mfma_f32_16x16x32_bf16 {vr(D+28)}, {vr(WT)}, {vr(T+28)}, 0')
    for p in range(4):
        a(f'v_cvt_pk_bf16_f32 v{12+p}, v{D+8*p}, v{D+8*p+4}')
        a(f'ds_bpermute_b32 v{XO+p}, v5, v{12+p}')
    a('s_waitcnt lgkmcnt(0)')
    D2 = 192
    for jj in range(8):
        a(f'v_mfma_f32_16x16x32_bf16 {vr(D2+4*jj)}, {vr(XO)}, {vr(UT+4*jj)}, 0')
    tag_store(D2, OUT, 7, 6, 's28', 's28', 0, 64)
    stamp(11)
    a('s_branch L_done')
    a.label('L_U3')
    WR = 32; WT_ = 96; G = 160; D = 192; XO = 24
    a('v_lshlrev_b32 v1, 4, v0')
    for f in range(1, 8):
        a(f'v_xor_b32 v{1+f}, {f*32}, v1')
    a(f'''
    s_sub_u32 s28, s3, 4                  ; k = 0..3
    s_waitcnt lgkmcnt(0)
    s_cmp_lt_u32 s28, 2
    s_cselect_b32 s16, s{PT['wo']}, s{PT['w_o']}
    s_cselect_b32 s17, s{PT['wo']+1}, s{PT['w_o']+1}
    s_mov_b32 s18, 0x400000
    s_mov_b32 s19, 0x20000
    ''')
    epoch_issue()
    a(f'''
    s_lshr_b32 s25, s4, 4
    s_lshl_b32 s25, s25, 9
    s_lshl_b32 s26, s28, 7
    s_add_u32 s25, s25, s26
    s_add_u32 s25, s25, {hex(QFLAG)}
    s_add_u32 s96, s12, s25
    s_addc_u32 s97, s13, 0
    s_lshr_b32 s27, s4, 5
    s_lshl_b32 s27, s27, 15
    s_lshl_b32 s29, s28, 13
    s_add_u32 s27, s27, s29
    s_add_u32 s27, s27, {hex(QABS)}
    s_add_u32 s29, s29, 0x20000
    v_lshrrev_b32 v9, 4, v0
    v_and_b32 v10, 15, v0
    v_lshlrev_b32 v11, 11, v9
    v_lshl_add_u32 v11, v10, 4, v11
    s_lshl_b32 s99, s4, 15
    s_and_b32 s26, s28, 1
    s_lshl_b32 s26, s26, 9
    s_add_u32 s99, s99, s26
    ''')
    perm_consts()
    epoch_finish()
    a(f'''
    s_mov_b32 s25, s24
    s_mov_b32 s7, 0
    L_qf:
    s_load_dwordx16 s[64:79], s[96:97], 0 glc
    s_load_dwordx16 s[80:95], s[96:97], 64 glc
    s_add_u32 s7, s7, 1
    s_waitcnt lgkmcnt(0)
    s_xor_b64 s[100:101], s[64:65], s[24:25]
    ''')
    for k in range(1, 16):
        a(f's_xor_b64 s[{64+2*k}:{65+2*k}], s[{64+2*k}:{65+2*k}], s[24:25]')
        a(f's_or_b64 s[100:101], s[100:101], s[{64+2*k}:{65+2*k}]')
    a(f'''
    s_cbranch_scc0 L_qfd
    s_cmp_lt_u32 s7, {P['maxpoll']}
    s_cbranch_scc1 L_qf
    L_qfd:
    ''')
    stamp(1)
    for k in range(8):
        if (k & 3) == 0: a('s_mov_b32 m0, s29')
        a(f'buffer_load_dwordx4 v{1+k}, {WS}, s27 offen offset:{(k&3)*1024} sc1 lds')
        if k == 3: a('s_add_u32 s27, s27, 4096\ns_add_u32 s29, s29, 4096')
    def w_loads(t0, t1):
        for t in range(t0, t1):
            for zz in range(2):
                for uu in range(2):
                    a(f'buffer_load_dwordx4 {vr(WR+32*uu+4*(2*t+zz))}, v11, {SW}, s99 offen offset:{zz*1024+uu*256} {NT}')
            if t < 3: a('s_add_u32 s99, s99, 0x2000')
    if P['wo_when'] == 'early':
        w_loads(0, 2)
        a('s_waitcnt vmcnt(8)')
    else:
        a('s_waitcnt vmcnt(0)')
    stamp(2)
    a('s_barrier                              ; B1\ns_barrier                              ; B2\ns_barrier                              ; B3')
    if P['wo_when'] == 'early':
        w_loads(2, 4)
    else:
        a('s_barrier                              ; B4')
        w_loads(0, 4)
    a(f'''
    v_bfe_u32 v3, v0, 2, 2
    v_and_b32 v4, 3, v0
    v_lshlrev_b32 v4, 4, v4
    v_lshl_add_u32 v2, v3, 11, v4
    v_lshl_add_u32 v2, v9, 9, v2
    s_mov_b32 s26, {hex(CTX)}
    s_cmp_lt_u32 s28, 2
    s_cselect_b32 s27, {hex(OA)}, s26
    s_lshl_b32 s26, s4, 13
    s_add_u32 s27, s27, s26
    v_lshl_add_u32 v6, v3, 14, v4
    v_lshl_add_u32 v6, v9, 18, v6
    s_lshr_b32 s29, s28, 1
    s_lshl_b32 s29, s29, 20
    s_and_b32 s26, s28, 1
    s_lshl_b32 s26, s26, 17
    s_add_u32 s29, s29, s26
    s_lshl_b32 s26, s4, 6
    s_add_u32 s29, s29, s26
    s_add_u32 s29, s29, {hex(FIN)}
    s_add_u32 s96, s29, 0x2000
    s_add_u32 s97, s29, 0x10000
    s_add_u32 s98, s29, 0x12000
    v_mov_b32 v7, 0xffffff00
    v_mov_b32 v20, 1.0
    v_mov_b32 v21, 1.0
    v_mov_b32 v22, 1.0
    v_mov_b32 v23, 1.0
    s_waitcnt vmcnt(0)
    ''')
    stamp(3)
    for uu in range(2):
        for jj in range(8):
            transpose_tile(WT_+32*uu+4*jj, WR+32*uu, jj)
    a(f'''
    s_cmp_lt_u32 s28, 2
    s_cbranch_scc0 L_U3g
    s_lshl_b32 s25, s5, 10
    s_add_u32 s25, s25, {hex(AST)}
    s_mov_b32 s7, 0
    L_U4p:
    buffer_load_dwordx4 v[12:15], v1, {WS}, s25 offen sc1
    s_waitcnt vmcnt(0)
    v_xor_b32 v8, s24, v14
    v_bitop3_b32 v8, v15, s24, v8 bitop3:0xbe
    ''')
    poll_tail(8, 'L_U4p', mask=None)
    stamp(4)
    a('v_mov_b32 v8, v12')
    allreduce_quad('v_max_f32', 8)
    allreduce_rows('v_max_f32', 8, 14)
    a('''
    v_sub_f32 v12, v12, v8
    v_exp_f32 v12, v12
    v_mul_f32 v8, v12, v13
    ''')
    allreduce_quad('v_add_f32', 8)
    allreduce_rows('v_add_f32', 8, 14)
    a('''
    v_rcp_f32 v8, v8
    v_mul_f32 v12, v12, v8
    ''')
    for p in range(4):
        a(f'v_mov_b32_dpp v{20+p}, v12 quad_perm:[{p},{p},{p},{p}] row_mask:0xf bank_mask:0xf')
    a('L_U3g:\ns_mov_b32 s7, 0\nL_U3p:')
    for k in range(8):
        a(f'buffer_load_dwordx4 {vr(G+4*k)}, v2, {WS}, s27 offen offset:{64*k} sc1')
    AC = 12
    for k in range(8):
        a(f's_waitcnt vmcnt({7-k})')
        tag_check(8, range(G+4*k, G+4*k+4), first=(k == 0))
        for e in range(4):
            op = 'v_mul_f32' if k < 2 else 'v_fmac_f32'
            a(f'{op} v{AC+4*(k&1)+e}, v{20+(k>>1)}, v{G+4*k+e}')
    poll_tail(8, 'L_U3p')
    stamp(5)
    for q in range(4):
        a(f'v_permlane32_swap_b32 v{AC+q}, v{AC+4+q}')
    for q in range(4):
        a(f'v_add_f32 v{AC+q}, v{AC+q}, v{AC+4+q}')
    for q in range(2):
        a(f'v_permlane16_swap_b32 v{AC+q}, v{AC+2+q}')
    for q in range(2):
        a(f'v_add_f32 v{AC+q}, v{AC+q}, v{AC+2+q}')
    a(f'v_cvt_pk_bf16_f32 v{AC}, v{AC}, v{AC+1}')
    for p in range(4):
        a(f'v_mov_b32_dpp v{XO+p}, v{AC} quad_perm:[{p},{p},{p},{p}] row_mask:0xf bank_mask:0xf')
    for uu in range(2):
        for jj in range(8):
            a(f'v_mfma_f32_16x16x32_bf16 {vr(D+32*uu+4*jj)}, {vr(XO)}, {vr(WT_+32*uu+4*jj)}, 0')
    tag_store(D, 32, 7, 6, 's29', 's96')
    tag_store(D+32, 40, 7, 6, 's97', 's98')
    stamp(6)
    a.label('L_done')
    if P['cal']:
        wg, wv, idx, mult = map(int, P['cal'].split(','))
        a(f'''
        s_cmp_eq_u32 s2, {wg}
        s_cbranch_scc0 L_exit
        s_cmp_eq_u32 s3, {wv}
        s_cbranch_scc0 L_exit
        s_waitcnt lgkmcnt(0)
        s_sub_u32 s25, s{32+2*idx}, s32
        s_mul_i32 s25, s25, {mult}
        s_add_u32 s25, s25, 6000
        s_min_u32 s25, s25, 100000
        L_cal:
        s_memrealtime s[26:27]
        s_waitcnt lgkmcnt(0)
        s_sub_u32 s26, s26, s32
        s_cmp_lt_u32 s26, s25
        s_cbranch_scc1 L_cal
        ''')
    elif diag:
        a(f'''
        s_waitcnt lgkmcnt(0)
        s_lshl_b32 s25, s2, 3
        s_add_u32 s25, s25, s3
        s_lshl_b32 s25, s25, 7
        s_add_u32 s25, s25, {hex(STAMP)}
        s_mov_b64 exec, 1
        v_mov_b32 v0, 0
        ''')
        for k in range(8):
            for e in range(4): a(f'v_mov_b32 v{4+4*(k&1)+e}, s{32+4*k+e}')
            a(f'buffer_store_dwordx4 {vr(4+4*(k&1))}, v0, {WS}, s25 offen offset:{16*k}')
    a.label('L_exit')
    a('s_endpgm')
    body, added = hazard.fix(a.text())
    return kernel_file([(NAME + '_kernel', body, 256, 102, 256)], [(NAME + '_kernel', 256, 512, 163840)]), added

if __name__ == '__main__':
    out = sys.argv[1]
    P = {}
    for kv in sys.argv[2:]:
        k, v = kv.split('=')
        if v in ('True', 'False'): v = (v == 'True')
        else:
            try: v = int(v, 0)
            except ValueError: pass
        P[k] = v
    txt, added = gen(P)
    open(out, 'w').write(txt)
    print(out, 'nop states added', added)
```

```python
import sys
from asmlib import *
import gen1, hazard
def real_body(P):
    txt, _ = gen1.gen(P)
    s = txt.index(NAME + '_kernel:\n') + len(NAME + '_kernel:\n')
    e = txt.index('.section .rodata')
    return txt[s:e]
def tinyA():
    return '''
    s_memrealtime s[4:5]
    s_cmp_ge_u32 s2, 1
    s_cbranch_scc1 LA_end
    s_load_dwordx2 s[6:7], s[0:1], 104
    s_waitcnt lgkmcnt(0)
    s_add_u32 s6, s6, 0x4000000
    s_addc_u32 s7, s7, 0
    v_mov_b32 v1, 0
    v_mov_b32 v2, s4
    global_store_dword v1, v2, s[6:7]
LA_end:
    s_endpgm
'''
def tinyZ(total):
    return f'''
    s_cmp_ge_u32 s2, 1
    s_cbranch_scc1 LZ_end
    s_load_dwordx2 s[6:7], s[0:1], 104
    s_waitcnt lgkmcnt(0)
    s_add_u32 s6, s6, 0x4000000
    s_addc_u32 s7, s7, 0
    s_load_dword s8, s[6:7], 0
    s_mov_b32 s9, 0
LZ_l:
    s_memrealtime s[4:5]
    s_add_u32 s9, s9, 1
    s_waitcnt lgkmcnt(0)
    s_sub_u32 s4, s4, s8
    s_cmp_gt_u32 s9, 100000
    s_cbranch_scc1 LZ_end
    s_cmp_lt_u32 s4, {total}
    s_cbranch_scc1 LZ_l
LZ_end:
    s_endpgm
'''
def empty():
    return '    s_endpgm\n'
def probe(bufs, flags, depth, mult, wg=0):
    a = Asm()
    a(f'''
    s_memrealtime s[20:21]
    s_cmp_ge_u32 s2, 256
    s_cbranch_scc1 LP_end''')
    for k, (off, kb) in enumerate(bufs):
        a(f's_load_dwordx2 s[{32+4*k}:{33+4*k}], s[0:1], {off}')
        a(f's_mov_b32 s{34+4*k}, {kb*1024*256}\ns_mov_b32 s{35+4*k}, 0x20000')
    a('''
    v_lshrrev_b32 v1, 6, v0
    v_and_b32 v2, 63, v0
    v_readfirstlane_b32 s3, v1
    v_lshlrev_b32 v2, 4, v2
    s_lshl_b32 s19, s3, 10
    s_mov_b32 m0, s19
    s_waitcnt lgkmcnt(0)''')
    for k, (off, kb) in enumerate(bufs):
        a(f'''s_mul_i32 s18, s2, {kb*1024}
        s_add_u32 s18, s18, s19
        s_mov_b32 s30, 0
        LP_{k}:
        buffer_load_dwordx4 v2, s[{32+4*k}:{35+4*k}], s18 offen {flags} lds
        s_add_u32 s18, s18, 4096
        s_add_u32 s30, s30, 1
        s_waitcnt vmcnt({depth-1})
        s_cmp_lt_u32 s30, {kb//4}
        s_cbranch_scc1 LP_{k}''')
    a(f'''
    s_waitcnt vmcnt(0)
    s_barrier
    s_memrealtime s[22:23]
    s_cmp_eq_u32 s2, {wg}
    s_cbranch_scc0 LP_end
    s_cmp_eq_u32 s3, 0
    s_cbranch_scc0 LP_end
    s_waitcnt lgkmcnt(0)
    s_sub_u32 s25, s22, s20
    s_mul_i32 s25, s25, {mult}
    s_add_u32 s25, s25, 3000
    s_min_u32 s25, s25, 100000
    LP_cal:
    s_memrealtime s[26:27]
    s_waitcnt lgkmcnt(0)
    s_sub_u32 s26, s26, s20
    s_cmp_lt_u32 s26, s25
    s_cbranch_scc1 LP_cal
    LP_end:
    s_endpgm''')
    return hazard.fix(a.text())[0]
R = (NAME + '_kernel', 256, 512, 163840)
def w(fn, kernels, launches): open(fn, 'w').write(kernel_file(kernels, launches))
rb = real_body({})
rc = real_body(dict(diag=True, cal='0,0,8,0'))
real = (NAME + '_kernel', rb, 256, 102, 256); realc = (NAME + '_kernel', rc, 256, 102, 256)
w('o1.s', [('e_kernel', empty(), 8, 16, 8), realc], [('e_kernel', 1, 64, 0), R])
w('o2.s', [('a_kernel', tinyA(), 8, 16, 8), real, ('z_kernel', tinyZ(6000), 8, 16, 8)], [('a_kernel', 1, 64, 0), R, ('z_kernel', 1, 64, 0)])
w('o3.s', [realc, ('e_kernel', empty(), 8, 16, 8)], [R, ('e_kernel', 1, 64, 0)])
KV = [(8, 112), (16, 112)]
LATE = [(48, 64), (56, 16), (64, 16), (72, 16), (80, 16)]
for nm, bufs in (('kv', KV), ('late', LATE)):
    for fl in ('nt', ''):
        w(f'p_{nm}_{fl}.s', [('p_kernel', probe(bufs, fl, 6, 10), 8, 64, 8), realc], [('p_kernel', 256, 256, 100*1024), R])
w(f'p_0.s', [('p_kernel', probe(KV, 'nt', 6, 0), 8, 64, 8), realc], [('p_kernel', 256, 256, 100*1024), R])
```

```python
import sys, struct, math
from asmlib import *
import hazard

DEF = dict(
    nt='nt',
    diag=False,
    ws0=0,
    maxpoll=20000,
    kv_depth=7,
    c_depth=8,
    c_first=8,
    c_nfirst=0,
    wq_gate='A2',
    wq_pre=0,
    stat_step=2,
    local=True,
    codepf=True,
    tlbwarm=True,
    cal=None,
)

def f2u(x): return struct.unpack('<I', struct.pack('<f', x))[0]
def vr(a, n=4): return f'v[{a}:{a+n-1}]' if n > 1 else f'v{a}'

class VM:
    def __init__(self, a): self.a = a; self.n = 0; self.done = 0
    def op(self, s): self.a(s); self.n += 1; return self.n
    def wait(self, oid, extra=''):
        if oid > self.done:
            self.a(f's_waitcnt vmcnt({self.n - oid}) {extra}'); self.done = oid
        elif extra: self.a(f's_waitcnt {extra}')
    def pace(self, depth):
        self.wait(self.n - (depth - 1))

def gen(P):
    P = {**DEF, **P}
    NT = P['nt']
    W0 = P['ws0']
    EPOCH = W0
    PAD = W0 + 0x800
    XT = W0 + 0x1000
    QFLAG = W0 + 0x4000
    FL3 = W0 + 0x8000
    AST = W0 + 0xC000
    OST = W0 + 0x10000
    QABS = W0 + 0x20000
    QPB = W0 + 0x40000
    QPA = W0 + 0x80000
    CTX = W0 + 0xC0000
    OA = W0 + 0x100000
    FIN = W0 + 0x201000
    OP = W0 + 0x402000
    STAMP = 0x8000000
    CSC = f2u(math.log2(math.e) / math.sqrt(128.0))
    a = Asm()
    diag = P['diag']
    def stamp(k):
        if diag: a(f's_memrealtime s[{32+2*k}:{33+2*k}]')
    WS = 's[12:15]'; SW = 's[16:19]'; S2 = 's[20:23]'; S3 = 's[88:91]'
    def srd(r, ptr, size):
        a(f's_mov_b32 s{r}, s{ptr}\ns_mov_b32 s{r+1}, s{ptr+1}\ns_mov_b32 s{r+2}, {hex(size)}\ns_mov_b32 s{r+3}, 0x20000')
    PT = dict(A_x=64, K=66, V=68, wq=70, wo=72, B_x=74, ckv=76, w_q=78, w_uk=80, w_uv=82, w_o=84, out=86)
    def epoch_issue():
        a(f's_load_dword s24, s[12:13], {hex(EPOCH)}' if EPOCH < (1 << 20) else f's_mov_b32 s92, {hex(EPOCH)}\ns_load_dword s24, s[12:13], s92')
    def epoch_finish():
        a('''s_waitcnt lgkmcnt(0)
        s_add_u32 s24, s24, 0x01010101
        s_and_b32 s8, s24, 0xff
        s_bfe_u32 s9, s24, 0x80008
        s_bfe_u32 s10, s24, 0x80010
        s_lshr_b32 s11, s24, 24''')
    def sum_terms(dst, terms, const):
        first = True
        for (src, sh) in terms:
            if first: a(f's_lshl_b32 {dst}, {src}, {sh}'); first = False
            else: a(f's_lshl_b32 s93, {src}, {sh}\ns_add_u32 {dst}, {dst}, s93')
        if const: a(f's_add_u32 {dst}, {dst}, {hex(const)}')
    def transpose_tile(dst, raw, jj):
        w = jj >> 1; sel = 's30' if (jj & 1) == 0 else 's31'
        for p in range(4):
            a(f'v_perm_b32 v{dst+p}, v{raw+(2*p+1)*4+w}, v{raw+(2*p)*4+w}, {sel}')
    def unit_mfma(D, X, T, raw, acc):
        for jj in range(8):
            transpose_tile(T+4*jj, raw, jj)
            if jj >= 1:
                j = jj - 1
                a(f'v_mfma_f32_16x16x32_bf16 {vr(D+4*j)}, {vr(X)}, {vr(T+4*j)}, {vr(D+4*j) if acc else 0}')
        a(f'v_mfma_f32_16x16x32_bf16 {vr(D+28)}, {vr(X)}, {vr(T+28)}, {vr(D+28) if acc else 0}')
    def perm_consts():
        a('s_mov_b32 s30, 0x05040100\ns_mov_b32 s31, 0x07060302')
    def strip4(acc, r, first, tags=None):
        for e in range(4):
            a(f'v_xor_b32 v{r+e}, {("s%d" % (8+e)) if tags is None else ("v%d" % (tags+e))}, v{r+e}')
        if first: a(f'v_or_b32 v{acc}, v{r}, v{r+1}')
        else: a(f'v_or3_b32 v{acc}, v{acc}, v{r}, v{r+1}')
        a(f'v_or3_b32 v{acc}, v{acc}, v{r+2}, v{r+3}')
    def poll_tail(acc, lab, cnt='s7', mask=0xff):
        done = a.newlabel('Lpd')
        if mask is not None: a(f'v_and_b32 v{acc}, {hex(mask)}, v{acc}')
        a(f'''v_cmp_ne_u32 vcc, 0, v{acc}
        s_cbranch_vccz {done}
        s_add_u32 {cnt}, {cnt}, 1
        s_cmp_lt_u32 {cnt}, {P['maxpoll']}
        s_cbranch_scc1 {lab}
        {done}:''')
    def allreduce_rows(op, x, t):
        a(f'''v_mov_b32 v{t}, v{x}
        v_permlane32_swap_b32 v{x}, v{t}
        {op} v{x}, v{x}, v{t}
        v_mov_b32 v{t}, v{x}
        v_permlane16_swap_b32 v{x}, v{t}
        {op} v{x}, v{x}, v{t}''')
    def allreduce_quad(op, x):
        a(f'''{op}_dpp v{x}, v{x}, v{x} quad_perm:[1,0,3,2] row_mask:0xf bank_mask:0xf
        {op}_dpp v{x}, v{x}, v{x} quad_perm:[2,3,0,1] row_mask:0xf bank_mask:0xf''')
    def qgather(voff, soff, G, Q, scratch):
        lab = a.newlabel('Lqg')
        a(f's_mov_b32 s7, 0\ns_add_u32 s26, {soff}, 4096\n{lab}:')
        for k in range(8):
            a(f'buffer_load_dwordx4 {vr(G+4*k)}, v{voff}, {WS}, {soff if k < 4 else "s26"} offen offset:{(k&3)*1024} sc1')
        for k in range(8):
            a(f's_waitcnt vmcnt({7-k})')
            strip4(scratch, G+4*k, k == 0)
            if k >= 2:
                for e in range(4): a(f'v_add_f32 v{G+4*(k&1)+e}, v{G+4*(k&1)+e}, v{G+4*k+e}')
        poll_tail(scratch, lab)
        for p in range(4):
            a(f'v_cvt_pk_bf16_f32 v{Q+p}, v{G+2*p}, v{G+2*p+1}')
    def diag_mfma8(W, Q, D, ACC, t=0):
        for e in range(8):
            a(f'v_mfma_f32_16x16x32_bf16 {vr(D+4*e)}, {vr(W+4*e)}, {vr(Q)}, 0')
        rs = [r for r in range(4) if r != t]
        for n, r in enumerate(rs):
            for e in range(8):
                src1 = D+4*e+t if n == 0 else ACC+e
                a(f'v_add_f32_dpp v{ACC+e}, v{D+4*e+r}, v{src1} quad_perm:[{r},{r},{r},{r}] row_mask:0xf bank_mask:0xf')
    def tag_store(D, OUT, vmask, voff, soff0, soff1, off0=0, off1=0):
        for half in range(2):
            for e in range(4):
                a(f'v_and_or_b32 v{OUT+4*half+e}, v{D+4*(4*half+e)}, v{vmask}, s{8+e}')
            a(f'buffer_store_dwordx4 {vr(OUT+4*half)}, v{voff}, {WS}, {(soff0, soff1)[half]} offen offset:{(off0, off1)[half]} sc1')
    def mode_store(text):
        if not P['local']:
            a(text + ' sc1'); return
        l1 = a.newlabel('Lms'); l2 = a.newlabel('Lme')
        a(f's_cmp_lg_u32 s94, 0\ns_cbranch_scc1 {l1}\n{text} sc1\ns_branch {l2}\n{l1}:\n{text}\n{l2}:')
    def xcc_publish(vt):
        a(f'''s_getreg_b32 s95, hwreg(HW_REG_XCC_ID, 0, 4)
        s_and_b32 s92, s2, 7
        s_lshl_b32 s92, s92, 9
        s_lshr_b32 s93, s2, 3
        s_lshl_b32 s93, s93, 4
        s_add_u32 s92, s92, s93
        s_add_u32 s92, s92, {hex(XT)}
        v_mov_b32 v{vt}, s95
        v_mov_b32 v{vt+1}, s24
        v_mov_b32 v{vt+2}, 0
        s_mov_b64 exec, 1
        buffer_store_dwordx2 {vr(vt, 2)}, v{vt+2}, {WS}, s92 offen sc1
        s_mov_b64 exec, -1''')
    def xcc_issue(vt, role):
        a(f'''s_lshr_b32 s92, s4, 4
        s_lshl_b32 s92, s92, 9
        s_add_u32 s92, s92, {hex(XT + role*256)}
        v_and_b32 v{vt}, 15, v0
        v_lshlrev_b32 v{vt}, 4, v{vt}''')
        return f'buffer_load_dwordx2 {vr(vt, 2)}, v{vt}, {WS}, s92 offen sc1'
    def xcc_finish(vt):
        a(f'''s_getreg_b32 s95, hwreg(HW_REG_XCC_ID, 0, 4)
        v_xor_b32 v{vt+1}, s24, v{vt+1}
        v_bitop3_b32 v{vt}, v{vt}, s95, v{vt+1} bitop3:0xbe
        v_cmp_ne_u32 vcc, 0, v{vt}
        s_cmp_eq_u64 vcc, 0
        s_cselect_b32 s94, 1, 0''')
    def tlb_warm(vt):
        if not P['tlbwarm']: return
        a(f'''v_lshlrev_b32 v{vt}, 21, v0
        s_mov_b32 s92, {hex(PAD)}
        s_mov_b64 exec, 0x1f
        buffer_load_dword v{vt+1}, v{vt}, {WS}, s92 offen
        s_mov_b64 exec, -1''')

    stamp(0)
    a(f'''
    s_cmp_ge_u32 s2, 256
    s_cbranch_scc1 L_exit
    s_load_dwordx2 s[12:13], s[0:1], 104
    s_load_dwordx16 s[64:79], s[0:1], 0
    s_load_dwordx8 s[80:87], s[0:1], 64
    v_lshrrev_b32 v1, 6, v0
    v_and_b32 v0, 63, v0
    v_readfirstlane_b32 s3, v1
    s_and_b32 s4, s2, 7
    s_lshl_b32 s4, s4, 4
    s_bfe_u32 s5, s2, 0x40003
    s_add_u32 s4, s4, s5          ; i = xcd*16 + y
    s_lshr_b32 s5, s4, 2          ; h
    s_and_b32 s6, s4, 3           ; quarter
    s_mov_b32 s14, 0x10000000
    s_mov_b32 s15, 0x20000
    ''')
    if diag:
        for k in range(1, 16): a(f's_mov_b64 s[{32+2*k}:{33+2*k}], 0')
    a('''
    s_cmp_ge_u32 s2, 128
    s_cbranch_scc1 L_B
    s_cmp_ge_u32 s3, 4
    s_cbranch_scc1 L_T4
    s_bitcmp1_b32 s3, 0
    s_cbranch_scc1 L_T2
    ''')
    X = 4; WR = 32; T = 160; D = 192; OUT = 224
    a(f'''
    v_lshrrev_b32 v2, 4, v0
    v_and_b32 v3, 15, v0
    v_lshlrev_b32 v1, 18, v2
    v_lshl_add_u32 v1, v3, 4, v1          ; W voffset = g*32*8192 + n*16
    v_lshrrev_b32 v3, 2, v3
    v_lshlrev_b32 v2, 6, v2
    v_lshl_add_u32 v2, v3, 10, v2         ; x voffset = b*1024 + g*64
    s_lshl_b32 s25, s6, 20
    s_lshl_b32 s26, s5, 8
    s_add_u32 s25, s25, s26               ; W soffset
    s_lshl_b32 s26, s6, 8                 ; x soffset
    s_movk_i32 s27, 0x2000
    s_mov_b32 s18, 0x400000
    s_mov_b32 s19, 0x20000
    s_movk_i32 s22, 0x1000
    s_mov_b32 s23, 0x20000
    s_cmp_eq_u32 s3, 0
    s_waitcnt lgkmcnt(0)
    s_cselect_b32 s16, s{PT['w_q']}, s{PT['wq']}
    s_cselect_b32 s17, s{PT['w_q']+1}, s{PT['wq']+1}
    s_cselect_b32 s20, s{PT['B_x']}, s{PT['A_x']}
    s_cselect_b32 s21, s{PT['B_x']+1}, s{PT['A_x']+1}
    ''')
    epoch_issue()
    a('''
    s_cbranch_scc1 L_T1go
    s_barrier                              ; A0
    s_waitcnt lgkmcnt(0)
    s_barrier                              ; A1
    ''')
    if P['wq_gate'] == 'A2': a('s_barrier                              ; A2')
    a.label('L_T1go')
    for u in range(4):
        a(f'buffer_load_dwordx4 {vr(X+4*u)}, v2, {S2}, s26 offen offset:{16*u}')
    for k in range(32):
        a(f'buffer_load_dwordx4 {vr(WR+4*k)}, v1, {SW}, s25 offen {NT}')
        if k < 31: a('s_add_u32 s25, s25, s27')
    if P['wq_gate'] == 'A2':
        a('s_cmp_eq_u32 s3, 0\ns_cbranch_scc0 L_T1b\ns_barrier                              ; A0\nL_T1b:')
    else:
        a('s_barrier                              ; A0 (wave 0) / A2 (wave 2)')
    stamp(1)
    perm_consts()
    epoch_finish()
    a(f'''
    v_mov_b32 v3, 0xffffff00
    v_lshlrev_b32 v2, 4, v0
    s_mov_b32 s28, {hex(QPA)}
    s_cmp_eq_u32 s3, 0
    s_cselect_b32 s25, {hex(QPB)}, s28
    s_lshl_b32 s26, s4, 11
    s_add_u32 s25, s25, s26
    ''')
    for u in range(4):
        a(f's_waitcnt vmcnt({24-8*u})')
        if u == 3: stamp(2)
        unit_mfma(D, X+4*u, T, WR+32*u, u > 0)
    tag_store(D, OUT, 3, 2, 's25', 's25', 0, 1024)
    stamp(3)
    a('''
    s_cmp_eq_u32 s3, 0
    s_cbranch_scc0 L_T3b
    s_waitcnt vmcnt(0)
    s_barrier                              ; A1
    s_barrier                              ; A2
    s_branch L_T5
    L_T3b:
    ''')
    a(f'''
    v_bfe_u32 v1, v0, 2, 2
    v_lshlrev_b32 v1, 13, v1              ; hh*8192
    v_lshrrev_b32 v4, 4, v0
    v_lshl_add_u32 v1, v4, 6, v1
    v_and_b32 v4, 3, v0
    v_lshl_add_u32 v1, v4, 4, v1
    s_lshr_b32 s25, s4, 4                 ; g_kv
    s_lshl_b32 s25, s25, 15
    s_bfe_u32 s26, s4, 0x20002            ; b
    s_lshl_b32 s26, s26, 8
    s_add_u32 s25, s25, s26
    s_add_u32 s25, s25, {hex(QPA)}
    s_waitcnt vmcnt(0)
    ''')
    qgather(1, 's25', 32, 8, 5)
    a('''
    ds_write_b128 v2, v[8:11]
    s_waitcnt lgkmcnt(0)
    ''')
    stamp(4)
    a.label('L_T5')
    G = 32
    a('s_barrier                              ; A3')
    srd(20, PT['out'], 8192)
    a('s_lshr_b32 s29, s3, 1                  ; half')
    sum_terms('s25', [('s4', 14), ('s29', 13)], FIN)
    a(f'''
    s_add_u32 s26, s25, 4096
    s_lshr_b32 s28, s4, 4
    s_lshl_b32 s28, s28, 11
    s_add_u32 s28, s28, {hex(FL3)}
    v_and_b32 v3, 3, v0
    v_lshrrev_b32 v4, 4, v0
    v_lshl_add_u32 v3, v3, 3, v4
    v_lshlrev_b32 v3, 1, v3
    s_bfe_u32 s96, s4, 0x20002
    s_lshr_b32 s97, s4, 4
    ''')
    sum_terms('s27', [('s96', 11), ('s97', 8), ('s6', 6), ('s29', 3)], 0)
    a('''
    s_mov_b32 s7, 0
    s_barrier                              ; A4
    s_barrier                              ; A5
    ''')
    stamp(5)
    a(f'''
    L_T5f:
    buffer_load_dword v6, v2, {WS}, s28 offen sc1
    buffer_load_dword v7, v2, {WS}, s28 offen offset:1024 sc1
    s_waitcnt vmcnt(0)
    v_xor_b32 v6, s24, v6
    v_bitop3_b32 v6, v7, s24, v6 bitop3:0xbe
    ''')
    poll_tail(6, 'L_T5f', mask=None)
    stamp(6)
    a('s_mov_b32 s7, 0\nL_T5p:')
    for k in range(8):
        a(f'buffer_load_dwordx4 {vr(G+4*k)}, v2, {WS}, {"s25" if k < 4 else "s26"} offen offset:{(k&3)*1024} sc1')
    for k in range(8):
        a(f's_waitcnt vmcnt({7-k})')
        strip4(5, G+4*k, k == 0)
        if k >= 1:
            for e in range(4): a(f'v_add_f32 v{G+e}, v{G+e}, v{G+4*k+e}')
    poll_tail(5, 'L_T5p')
    stamp(7)
    a(f'''
    v_permlane32_swap_b32 v{G}, v{G+2}
    v_permlane32_swap_b32 v{G+1}, v{G+3}
    v_add_f32 v{G}, v{G}, v{G+2}
    v_add_f32 v{G+1}, v{G+1}, v{G+3}
    v_permlane16_swap_b32 v{G}, v{G+1}
    v_add_f32 v{G}, v{G}, v{G+1}
    v_add_f32_dpp v{G}, v{G}, v{G} row_ror:8 row_mask:0xf bank_mask:0xf
    v_add_f32_dpp v{G}, v{G}, v{G} row_ror:4 row_mask:0xf bank_mask:0xf
    v_cvt_pk_bf16_f32 v{G}, v{G}, v{G}
    s_mov_b32 exec_lo, 0x000f000f
    s_mov_b32 exec_hi, 0x000f000f
    buffer_store_short v{G}, v3, {S2}, s27 offen
    s_lshl_b32 s28, s3, 8
    s_or_b32 s28, s28, s4
    s_cmp_eq_u32 s28, 64
    s_cbranch_scc0 L_T5e
    s_mov_b64 exec, 1
    v_mov_b32 v6, s24
    s_mov_b32 s25, {hex(EPOCH)}
    buffer_store_dword v6, v2, {WS}, s25 offen sc1
    L_T5e:
    s_mov_b64 exec, -1
    ''')
    stamp(8)
    if diag: a('s_mov_b32 s50, s7\ns_mov_b32 s51, 0')
    a('s_branch L_done')
    a.label('L_T2')
    WR = 32; G = 96; Q = 8; D = 128; ACC = 192; PK = 208
    a(f'''
    v_bfe_u32 v3, v0, 2, 2                ; rho / b
    v_lshrrev_b32 v4, 4, v0               ; g
    v_and_b32 v5, 3, v0
    v_lshlrev_b32 v5, 4, v5
    v_lshl_add_u32 v5, v4, 6, v5          ; g*64 + k*16
    v_lshl_add_u32 v1, v3, 17, v5         ; W voffset
    v_lshl_add_u32 v2, v3, 8, v5
    s_lshr_b32 s28, s3, 1                 ; z
    ''')
    sum_terms('s25', [('s6', 20), ('s5', 8), ('s28', 19)], 0)
    a('''
    s_movk_i32 s27, 0x2000
    s_waitcnt lgkmcnt(0)
    ''')
    srd(16, PT['w_uk'], 0x400000)
    epoch_issue()
    a('s_barrier                              ; A0')
    for k in range(16):
        a(f'buffer_load_dwordx4 {vr(WR+4*k)}, v1, {SW}, s25 offen {NT}')
        if k < 15: a('s_add_u32 s25, s25, s27')
    stamp(1)
    epoch_finish()
    a(f'''
    s_lshl_b32 s25, s5, 13
    s_add_u32 s25, s25, {hex(QPB)}
    v_lshrrev_b32 v12, 3, v0
    v_and_b32 v13, 7, v0
    v_lshlrev_b32 v13, 4, v13
    v_lshl_add_u32 v6, v12, 15, v13
    v_bfe_u32 v13, v0, 1, 2
    v_lshlrev_b32 v13, 4, v13
    v_lshl_add_u32 v13, v12, 2, v13
    v_and_b32 v14, 1, v0
    v_add_lshl_u32 v12, v13, v14, 2
    v_cmp_eq_u32 s[96:97], 1, v14
    v_lshlrev_b32 v13, 11, v0
    v_mov_b32 v14, s24
    ''')
    sum_terms('s29', [('s4', 8), ('s28', 7)], QABS)
    sum_terms('s28', [('s4', 4)], QFLAG)
    a('s_barrier                              ; A1')
    stamp(2)
    qgather(2, 's25', G, Q, 7)
    stamp(3)
    diag_mfma8(WR, Q, D, ACC, 0)
    diag_mfma8(WR+32, Q, D+32, ACC+8, 1)
    for e in range(8):
        a(f'v_cndmask_b32 v{ACC+e}, v{ACC+e}, v{ACC+8+e}, s[96:97]')
    for p in range(4):
        a(f'v_cvt_pk_bf16_f32 v{PK+p}, v{ACC+2*p}, v{ACC+2*p+1}')
        a(f'ds_bpermute_b32 v{PK+4+p}, v12, v{PK+p}')
    a(f'''
    s_waitcnt lgkmcnt(0)
    s_mov_b32 exec_hi, 0
    buffer_store_dwordx4 {vr(PK+4)}, v6, {WS}, s29 offen sc1
    ''')
    stamp(4)
    a(f'''
    s_mov_b64 exec, 0xff
    s_waitcnt vmcnt(0)
    s_barrier                              ; A2
    s_cmp_eq_u32 s3, 1
    s_cbranch_scc0 L_done
    buffer_store_dword v14, v13, {WS}, s28 offen sc1
    ''')
    stamp(5)
    a('s_branch L_done')
    a.label('L_T4')
    KR = 32; VR = 96; Q = 8; D = 160; ACC = 192; T = 208; PP = 240
    WOR = 32
    a(f'''
    v_bfe_u32 v3, v0, 2, 2
    v_lshrrev_b32 v4, 4, v0
    v_and_b32 v5, 3, v0
    v_lshlrev_b32 v5, 4, v5
    v_lshl_add_u32 v1, v4, 6, v5
    v_lshl_add_u32 v1, v3, 8, v1
    v_lshlrev_b32 v2, 4, v0               ; V voffset
    s_lshr_b32 s26, s4, 4                 ; g_kv
    s_bfe_u32 s27, s4, 0x20002            ; b
    s_sub_u32 s28, s3, 4                  ; k
    ''')
    sum_terms('s25', [('s27', 23), ('s26', 20), ('s6', 16), ('s28', 14)], 3072*256)
    a('s_waitcnt lgkmcnt(0)')
    epoch_issue()
    srd(16, PT['K'], 0x2000000)
    srd(20, PT['V'], 0x2000000)
    srd(88, PT['wo'], 0x400000)
    a('s_barrier                              ; A0')
    if P['codepf']:
        a(f'''
        s_getpc_b64 s[96:97]
        L_pc1:
        s_sub_u32 s96, s96, L_pc1-{NAME}_kernel
        s_subb_u32 s97, s97, 0
        s_and_b32 s29, s4, 15
        s_lshl_b32 s29, s29, 10
        s_lshl_b32 s98, s28, 8
        s_add_u32 s29, s29, s98
        v_lshl_add_u32 v6, v0, 2, s29
        v_min_u32 v6, L_exit-{NAME}_kernel-4, v6
        global_load_dword v12, v6, s[96:97]
        ''')
    tlb_warm(14)
    perm_consts()
    sum_terms('s96', [('s26', 10), ('s28', 8), ('s6', 6), ('s27', 4)], AST)
    sum_terms('s97', [('s5', 8)], AST)
    sum_terms('s98', [('s26', 15), ('s28', 10), ('s6', 8), ('s27', 6)], OA)
    sum_terms('s99', [('s4', 11)], OA)
    a(f'''
    v_lshrrev_b32 v7, 2, v0
    v_lshlrev_b32 v6, 4, v7
    v_lshl_add_u32 v7, v7, 11, v5
    s_mov_b32 s100, 0                     ; part
    s_mov_b32 s101, 0x1000
    s_mov_b32 s29, {hex(CSC)}
    v_lshlrev_b32 v21, 3, v3
    v_add_u32 v21, 0x800, v21
    s_lshl_b32 s92, s28, 5
    v_add_u32 v20, s92, v21
    v_and_b32 v22, 15, v0
    v_lshlrev_b32 v22, 4, v22
    v_lshl_add_u32 v22, v4, 11, v22
    v_mov_b32 v23, 0
    ''')
    epoch_finish()
    if P['local']:
        a('s_cmp_eq_u32 s3, 4\ns_cbranch_scc0 L_T4x')
        xcc_publish(16)
        a.label('L_T4x')
    a('s_barrier                              ; A1')
    if P['local']: xl = xcc_issue(16, 0)
    a('s_waitcnt vmcnt(0)\ns_barrier                              ; A2')
    stamp(1)
    vm = VM(a)
    dp = P['kv_depth']
    if P['local']:
        idx = vm.op(xl)
        vm.op(f'buffer_load_dwordx4 v[24:27], v2, {WS}, s99 offen sc1')
        vm.op(f'buffer_load_dwordx4 v[24:27], v2, {WS}, s99 offen offset:1024 sc1')
        vm.op(f'buffer_load_dwordx4 v[24:27], v6, {WS}, s97 offen sc1')
    kid = []
    for k in range(32):
        vm.pace(dp)
        if k < 16:
            kid.append(vm.op(f'buffer_load_dwordx4 {vr(KR+4*k)}, v1, {SW}, s25 offen offset:{(k&3)*1024} {NT}'))
        else:
            kid.append(vm.op(f'buffer_load_dwordx4 {vr(VR+4*(k-16))}, v2, {S2}, s25 offen offset:{(k&3)*1024} {NT}'))
        if (k & 3) == 3 and k != 31:
            a(f's_add_u32 s25, s25, 4096' if k != 15 else 's_sub_u32 s25, s25, 12288')
    stamp(2)
    sum_terms('s25', [('s4', 15), ('s28', 8)], 0)
    wid = []
    def wo_load(e):
        vm.pace(dp)
        wid.append(vm.op(f'buffer_load_dwordx4 {vr(WOR+4*e)}, v22, {S3}, s25 offen offset:{(e&1)*1024} {NT}'))
        if (e & 1) and e < 7: a('s_add_u32 s25, s25, 0x2000')
    if P['local']:
        vm.wait(idx); xcc_finish(16)
    a(f'''
    s_barrier                              ; A3
    ds_read_b128 {vr(Q)}, v2
    ''')
    vm.wait(kid[15], 'lgkmcnt(0)')
    stamp(3)
    diag_mfma8(KR, Q, D, ACC)
    wo_load(0)
    diag_mfma8(KR+32, Q, D, ACC+8)
    wo_load(1)
    a(f'v_max3_f32 v12, v{ACC}, v{ACC+1}, v{ACC+2}')
    for e in range(3, 15, 2):
        a(f'v_max3_f32 v12, v12, v{ACC+e}, v{ACC+e+1}')
    a(f'v_max_f32 v12, v12, v{ACC+15}')
    allreduce_rows('v_max_f32', 12, 16)
    a('v_mul_f32 v12, s29, v12')
    for e in range(16):
        a(f'v_fma_f32 v{ACC+e}, v{ACC+e}, s29, -v12')
    for e in range(16):
        a(f'v_exp_f32 v{ACC+e}, v{ACC+e}')
    for e in range(8):
        a(f'v_add_f32 v{T+e}, v{ACC+e}, v{ACC+8+e}')
    for st in (4, 2):
        for e in range(st):
            a(f'v_add_f32 v{T+e}, v{T+e}, v{T+st+e}')
    a(f'v_add_f32 v13, v{T}, v{T+1}')
    allreduce_rows('v_add_f32', 13, 16)
    a(f'''
    s_mov_b64 exec, 0x1111
    ds_write_b64 v20, v[12:13]
    s_mov_b64 exec, -1
    ''')
    wo_load(2)
    a(f'''
    s_waitcnt lgkmcnt(0)
    s_barrier                              ; A4
    ds_read_b64 {vr(T, 2)}, v21
    ds_read_b64 {vr(T+2, 2)}, v21 offset:32
    ds_read_b64 {vr(T+4, 2)}, v21 offset:64
    ds_read_b64 {vr(T+6, 2)}, v21 offset:96
    s_lshl_b32 s92, s28, 2
    s_lshl_b64 s[92:93], 1, s92
    s_waitcnt lgkmcnt(0)
    v_max3_f32 v16, v{T}, v{T+2}, v{T+4}
    v_max_f32 v16, v16, v{T+6}
    v_sub_f32 v12, v12, v16
    v_sub_f32 v{T}, v{T}, v16
    v_sub_f32 v{T+2}, v{T+2}, v16
    v_sub_f32 v{T+4}, v{T+4}, v16
    v_sub_f32 v{T+6}, v{T+6}, v16
    v_exp_f32 v12, v12
    v_exp_f32 v{T}, v{T}
    v_exp_f32 v{T+2}, v{T+2}
    v_exp_f32 v{T+4}, v{T+4}
    v_exp_f32 v{T+6}, v{T+6}
    v_mul_f32 v17, v{T}, v{T+1}
    v_fmac_f32 v17, v{T+2}, v{T+3}
    v_fmac_f32 v17, v{T+4}, v{T+5}
    v_fmac_f32 v17, v{T+6}, v{T+7}
    v_mov_b32 v18, s24
    v_mov_b32 v19, s24
    s_mov_b64 exec, s[92:93]
    ''')
    mode_store(f'buffer_store_dwordx4 v[16:19], v23, {WS}, s96 offen'); vm.n += 1
    a('s_mov_b64 exec, -1')
    for e in range(16):
        a(f'v_mul_f32 v{ACC+e}, v{ACC+e}, v12')
    for p in range(8):
        a(f'v_cvt_pk_bf16_f32 v{PP+p}, v{ACC+2*p}, v{ACC+2*p+1}')
    stamp(4)
    wo_load(3)
    vm.wait(kid[23])
    unit_mfma(D, PP, T, VR, False)
    for e in range(4, 8): wo_load(e)
    sid = vm.op(f'buffer_load_dwordx4 v[12:15], v6, {WS}, s97 offen sc1')
    vm.wait(kid[31])
    stamp(5)
    unit_mfma(D, PP+4, T, VR+32, True)
    a(f's_lshl_b32 s92, s28, 11\ns_add_u32 s92, s92, s101\nv_add_u32 v3, s92, v2')
    for e in range(8):
        a(f'v_mov_b32 v{T+e}, v{D+4*e}')
    a(f'''
    ds_write_b128 v3, {vr(T)}
    ds_write_b128 v3, {vr(T+4)} offset:1024
    s_waitcnt lgkmcnt(0)
    ''')
    a.label('L_OP')
    WT_ = 64; G = 96; D = 128; XO = 24; OUT = 160
    a(f'''
    s_lshl_b32 s92, s28, 10
    s_add_u32 s92, s92, s101
    v_add_u32 v3, s92, v2
    v_mov_b32 v9, 0xffffff00
    s_cmp_lt_u32 s28, 2
    s_barrier                              ; A5 / B4
    s_cbranch_scc0 L_OPn
    ds_read_b128 {vr(G)}, v3
    ds_read_b128 {vr(G+4)}, v3 offset:2048
    ds_read_b128 {vr(G+8)}, v3 offset:4096
    ds_read_b128 {vr(G+12)}, v3 offset:6144
    s_waitcnt lgkmcnt(2)
    ''')
    for e in range(4): a(f'v_add_f32 v{G+e}, v{G+e}, v{G+4+e}')
    a('s_waitcnt lgkmcnt(0)')
    for e in range(4): a(f'v_add_f32 v{G+8+e}, v{G+8+e}, v{G+12+e}')
    for e in range(4): a(f'v_add_f32 v{G+e}, v{G+e}, v{G+8+e}')
    for e in range(4): a(f'v_and_or_b32 v{G+16+e}, v{G+e}, v9, s{8+e}')
    mode_store(f'buffer_store_dwordx4 {vr(G+16)}, v7, {WS}, s98 offen')
    a.label('L_OPn')
    stamp(6)
    a(f'''
    v_lshrrev_b32 v10, 2, v0
    v_and_b32 v11, 3, v0
    v_lshlrev_b32 v11, 4, v11
    v_lshl_add_u32 v10, v10, 14, v11
    s_lshl_b32 s27, s100, 2
    s_add_u32 s27, s27, s28
    ''')
    sum_terms('s25', [('s27', 18), ('s4', 6)], FIN)
    a('s_add_u32 s26, s25, 0x2000')
    sum_terms('s29', [('s27', 11), ('s4', 4)], FL3)
    a(f'''
    v_mov_b32 v11, s24
    v_mov_b32 v23, 0
    v_mov_b32 v20, 1.0
    s_mov_b32 s7, 0
    s_waitcnt vmcnt(0)
    ''')
    stamp(7)
    a(f'''
    buffer_load_dwordx4 {vr(G)}, v2, {WS}, s99 offen sc1
    buffer_load_dwordx4 {vr(G+4)}, v2, {WS}, s99 offen offset:1024 sc1
    s_cmp_eq_u32 s100, 0
    s_cbranch_scc0 L_OPc
    ''')
    for jj in range(8):
        transpose_tile(WT_+4*jj, 32, jj)
    a(f'''
    s_branch L_OPs1
    L_OPs:
    buffer_load_dwordx4 v[12:15], v6, {WS}, s97 offen sc1
    s_waitcnt vmcnt(0)
    L_OPs1:
    v_xor_b32 v8, s24, v14
    v_bitop3_b32 v8, v15, s24, v8 bitop3:0xbe
    ''')
    poll_tail(8, 'L_OPs', mask=None)
    a('v_mov_b32 v8, v12')
    allreduce_rows('v_max_f32', 8, 14)
    a('''
    v_sub_f32 v12, v12, v8
    v_exp_f32 v12, v12
    v_mul_f32 v8, v12, v13
    ''')
    allreduce_rows('v_add_f32', 8, 14)
    a(f'''
    v_rcp_f32 v8, v8
    v_mul_f32 v20, v12, v8
    s_mov_b32 s7, 0
    s_branch L_OPc
    L_OPp:
    buffer_load_dwordx4 {vr(G)}, v2, {WS}, s99 offen sc1
    buffer_load_dwordx4 {vr(G+4)}, v2, {WS}, s99 offen offset:1024 sc1
    L_OPc:
    s_waitcnt vmcnt(1)
    ''')
    strip4(8, G, True)
    a('s_waitcnt vmcnt(0)')
    strip4(8, G+4, False)
    poll_tail(8, 'L_OPp')
    a(f'''
    s_mov_b64 exec, 1
    buffer_store_dword v11, v23, {WS}, s29 offen sc1
    s_mov_b64 exec, -1
    ''')
    stamp(8)
    for e in range(8): a(f'v_mul_f32 v{G+e}, v{G+e}, v20')
    for q in range(4): a(f'v_permlane32_swap_b32 v{G+q}, v{G+4+q}')
    for q in range(4): a(f'v_add_f32 v{G+q}, v{G+q}, v{G+4+q}')
    for q in range(2): a(f'v_permlane16_swap_b32 v{G+q}, v{G+2+q}')
    for q in range(2): a(f'v_add_f32 v{G+q}, v{G+q}, v{G+2+q}')
    a(f'v_cvt_pk_bf16_f32 v{G}, v{G}, v{G+1}')
    for p in range(4):
        a(f'v_mov_b32_dpp v{XO+p}, v{G} quad_perm:[{p},{p},{p},{p}] row_mask:0xf bank_mask:0xf')
    for jj in range(8):
        a(f'v_mfma_f32_16x16x32_bf16 {vr(D+4*jj)}, {vr(XO)}, {vr(WT_+4*jj)}, 0')
    tag_store(D, OUT, 9, 10, 's25', 's26')
    stamp(9)
    if diag: a('s_mov_b32 s52, s7\ns_mov_b32 s53, 0\ns_mov_b32 s54, s94\ns_mov_b32 s55, 0')
    a('s_branch L_done')

    a.label('L_B')
    a('''
    s_cmp_ge_u32 s3, 4
    s_cbranch_scc1 L_U3
    ''')
    SA = 16; UV = 32; CF = 64; TR = 192; QB = 224
    a('v_lshlrev_b32 v1, 4, v0')
    for f in range(1, 8):
        a(f'v_xor_b32 v{1+f}, {f*32}, v1')
    a(f'''
    s_lshl_b32 s26, s3, 15
    s_lshl_b32 s25, s4, 17
    s_add_u32 s25, s25, s26
    s_waitcnt lgkmcnt(0)
    ''')
    srd(16, PT['ckv'], 0x1000000)
    srd(20, PT['w_uv'], 0x400000)
    epoch_issue()
    vm = VM(a)
    cid = []
    for k in range(32):
        if (k & 3) == 0:
            a(f's_mov_b32 m0, s26')
        vm.pace(P['c_first'] if k < P['c_nfirst'] else P['c_depth'])
        cid.append(vm.op(f'buffer_load_dwordx4 v{1+(k&7)}, {SW}, s25 offen offset:{(k&3)*1024} {NT} lds'))
        if (k & 3) == 3 and k != 31:
            a('s_add_u32 s25, s25, 4096\ns_add_u32 s26, s26, 4096')
    stamp(1)
    epoch_finish()
    perm_consts()
    a(f'''
    v_lshrrev_b32 v9, 4, v0               ; g
    v_and_b32 v10, 15, v0                 ; n
    v_lshlrev_b32 v11, 13, v9
    v_lshl_add_u32 v11, v10, 4, v11
    s_mov_b32 s98, {hex(CSC)}
    v_and_b32 v5, 7, v0
    v_lshlrev_b32 v5, 1, v5
    v_xor_b32 v5, v5, v9
    v_lshlrev_b32 v5, 4, v5
    v_lshl_add_u32 v1, v10, 10, v5
    s_lshl_b32 s26, s3, 15
    v_add_u32 v1, s26, v1
    v_xor_b32 v2, 64, v1
    v_xor_b32 v3, 128, v1
    v_xor_b32 v4, 192, v1
    v_lshrrev_b32 v6, 2, v0
    v_and_b32 v7, 7, v6
    v_lshlrev_b32 v7, 5, v7
    v_lshl_add_u32 v5, v6, 10, v7
    v_and_b32 v7, 3, v0
    v_lshl_add_u32 v5, v7, 3, v5
    s_mul_i32 s27, s3, 33024
    v_add_u32 v5, s27, v5
    ''')
    sum_terms('s25', [('s6', 20), ('s3', 15), ('s5', 8)], 0)
    def tr_reads(dst, step, jjs):
        for jj in jjs:
            t = 6 + (jj & 1)
            a(f'v_xor_b32 v{t}, {hex(jj*32 | step << 15)}, v5')
            a(f'ds_read_b64_tr_b16 {vr(dst+4*jj, 2)}, v{t}')
            a(f'ds_read_b64_tr_b16 {vr(dst+4*jj+2, 2)}, v{t} offset:16384')
    for kt in range(2):
        vm.wait(cid[16*kt+15])
        if kt == 1: stamp(2)
        for ks in range(16):
            a(f'ds_read_b128 {vr(CF+8*ks+4*kt)}, v{1+(ks&3)} offset:{kt*16384+(ks>>2)*256}')
    tr_reads(TR, 0, range(8))
    a(f'''
    s_sub_u32 s27, 0x20000, s26
    v_add_u32 v1, s27, v1
    v_add_u32 v2, s27, v2
    v_add_u32 v3, s27, v3
    v_add_u32 v4, s27, v4
    s_waitcnt lgkmcnt(0)
    ''')
    stamp(3)
    a('s_barrier                              ; B1')
    stamp(4)
    def q_read(ks):
        for ht in range(2):
            a(f'ds_read_b128 {vr(QB+8*(ks&3)+4*ht)}, v{1+(ks&3)} offset:{ht*16384+(ks>>2)*256}')
    for ks in range(3): q_read(ks)
    for ks in range(16):
        if ks + 3 < 16: q_read(ks + 3)
        if ks < 8:
            vm.op(f'buffer_load_dwordx4 {vr(UV+4*ks)}, v11, {S2}, s25 offen {NT}')
            if ks < 7: a(f's_add_u32 s25, s25, {16*8192}')
        a(f's_waitcnt lgkmcnt({2*min(3, 15-ks)})')
        for kt in range(2):
            for ht in range(2):
                d = SA + 8*ht + 4*kt
                a(f'v_mfma_f32_16x16x32_bf16 {vr(d)}, {vr(CF+8*ks+4*kt)}, {vr(QB+8*(ks&3)+4*ht)}, {vr(d) if ks else 0}')
    a(f'''
    v_lshlrev_b32 v2, 3, v10
    v_lshrrev_b32 v1, 5, v0
    v_lshl_add_u32 v1, v1, 2, v2
    s_mul_i32 s27, s3, 33024
    v_add_u32 v1, s27, v1
    v_add_u32 v3, 66048, v2
    ''')
    for ht in range(2):
        b = SA + 8*ht
        a(f'''v_max3_f32 v{12+ht}, v{b}, v{b+1}, v{b+2}
        v_max3_f32 v{12+ht}, v{12+ht}, v{b+3}, v{b+4}
        v_max3_f32 v{12+ht}, v{12+ht}, v{b+5}, v{b+6}
        v_max_f32 v{12+ht}, v{12+ht}, v{b+7}''')
    a(f'''
    v_permlane32_swap_b32 v12, v13
    v_max_f32 v12, v12, v13
    v_mov_b32 v13, v12
    v_permlane16_swap_b32 v12, v13
    v_max_f32 v12, v12, v13
    ds_write_b32 v1, v12
    s_waitcnt lgkmcnt(0)
    ''')
    stamp(5)
    E0 = 64
    a(f'''
    s_barrier                              ; B2
    ds_read_b64 {vr(E0, 2)}, v2
    ds_read_b64 {vr(E0+2, 2)}, v2 offset:33024
    ds_read_b64 {vr(E0+4, 2)}, v3
    ds_read_b64 {vr(E0+6, 2)}, v3 offset:33024
    s_lshl_b32 s27, s3, 11
    s_add_u32 s27, s27, 0x20000
    v_lshl_add_u32 v4, v0, 4, s27
    s_waitcnt lgkmcnt(0)
    v_max3_f32 v12, v{E0}, v{E0+2}, v{E0+4}
    v_max3_f32 v13, v{E0+1}, v{E0+3}, v{E0+5}
    v_max_f32 v12, v12, v{E0+6}
    v_max_f32 v13, v13, v{E0+7}
    v_mul_f32 v12, s98, v12
    v_mul_f32 v13, s98, v13
    ''')
    for e in range(16):
        a(f'v_fma_f32 v{SA+e}, v{SA+e}, s98, -v{12+(e>>3)}')
    for e in range(16):
        a(f'v_exp_f32 v{SA+e}, v{SA+e}')
    PF = 72
    for p in range(8):
        a(f'v_cvt_pk_bf16_f32 v{PF+p}, v{SA+2*p}, v{SA+2*p+1}')
    a(f'''
    ds_write_b128 v4, {vr(PF)}
    ds_write_b128 v4, {vr(PF+4)} offset:1024
    ''')
    for ht in range(2):
        b = SA + 8*ht
        for st in (4, 2):
            for e in range(st):
                a(f'v_add_f32 v{b+e}, v{b+e}, v{b+st+e}')
        a(f'v_add_f32 v{14+ht}, v{b}, v{b+1}')
    a(f'''
    v_permlane32_swap_b32 v14, v15
    v_add_f32 v14, v14, v15
    v_mov_b32 v15, v14
    v_permlane16_swap_b32 v14, v15
    v_add_f32 v14, v14, v15
    ds_write_b32 v1, v14 offset:128
    ''')
    OA0 = 160; OA1 = 224; TR2 = 104; TG = 28
    def oacc(ht, jj): return (OA0, OA1)[ht] + 4*jj
    def pv(step, jj, ht):
        tr = (TR, TR2)[step & 1]
        d = oacc(ht, jj)
        a(f'v_mfma_f32_16x16x32_bf16 {vr(d)}, {vr(PF+8*step+4*ht)}, {vr(tr+4*jj)}, {vr(d) if step else 0}')
    for jj in range(2):
        for ht in range(2): pv(0, jj, ht)
    a('s_waitcnt lgkmcnt(0)')
    stamp(6)
    a(f'''
    s_barrier                              ; B3
    ds_read_b64 {vr(E0, 2)}, v2 offset:128
    ds_read_b64 {vr(E0+2, 2)}, v2 offset:{33024+128}
    ds_read_b64 {vr(E0+4, 2)}, v3 offset:128
    ds_read_b64 {vr(E0+6, 2)}, v3 offset:{33024+128}
    ''')
    for st in range(1, 4):
        a(f'v_xor_b32 v8, {st << 11}, v4')
        a(f'ds_read_b128 {vr(PF+8*st)}, v8')
        a(f'ds_read_b128 {vr(PF+8*st+4)}, v8 offset:1024')
    tr_reads(TR2, 1, range(0, 2))
    for jj in range(2, 8):
        for ht in range(2): pv(0, jj, ht)
        tr_reads(TR2, 1, [jj])
    side1 = f'''v_add_f32 v14, v{E0}, v{E0+2}
    v_add_f32 v15, v{E0+1}, v{E0+3}
    v_add_f32 v14, v14, v{E0+4}
    v_add_f32 v15, v15, v{E0+5}
    v_add_f32 v14, v14, v{E0+6}
    v_add_f32 v15, v15, v{E0+7}
    v_cmp_gt_u32 vcc, 16, v0
    v_lshrrev_b32 v8, 2, v0
    v_and_b32 v20, 3, v0
    v_lshlrev_b32 v21, 4, v20
    v_lshl_add_u32 v8, v8, 13, v21
    v_mov_b32 v18, s24
    v_mov_b32 v19, s24
    v_cndmask_b32 v16, v13, v12, vcc
    v_cndmask_b32 v17, v15, v14, vcc
    v_lshlrev_b32 v20, 3, v20'''.split('\n')
    side2 = f'''v_lshrrev_b32 v20, v20, v18
    v_lshlrev_b32 v22, 15, v20
    v_and_b32 v20, 0x55, v20
    v_and_b32 v22, 0x550000, v22
    v_or_b32 v20, v20, v22
    v_and_b32 v{TG}, 0x10001, v20
    v_lshrrev_b32 v20, 2, v20
    v_and_b32 v{TG+1}, 0x10001, v20
    v_lshrrev_b32 v20, 2, v20
    v_and_b32 v{TG+2}, 0x10001, v20
    v_lshrrev_b32 v20, 2, v20
    v_and_b32 v{TG+3}, 0x10001, v20
    v_lshlrev_b32 v11, 19, v9
    v_lshl_add_u32 v11, v10, 4, v11'''.split('\n')
    def stats_store():
        a(f'''s_lshl_b32 s92, s3, 3
        s_lshl_b64 s[92:93], 0xff, s92
        s_lshl_b32 s27, s4, 6
        s_add_u32 s27, s27, {hex(OST)}
        s_mov_b64 exec, s[92:93]''')
        vm.op(f'buffer_store_dwordx4 v[16:19], v8, {WS}, s27 offen sc1')
        a('s_mov_b64 exec, -1')
    for st in (1, 2):
        nxt = (TR, TR2)[(st+1) & 1]
        side = (side1, side2)[st-1]
        if P['stat_step'] == st and st == 2: stats_store()
        for jj in range(8):
            a('s_waitcnt lgkmcnt(14)')
            for ht in range(2): pv(st, jj, ht)
            tr_reads(nxt, st+1, [jj])
            for s in side[2*jj:2*jj+2]: a(s)
    if P['stat_step'] == 3: stats_store()
    sum_terms('s25', [('s3', 15), ('s4', 8)], OP)
    a('s_mov_b32 s26, 0xfffefffe\ns_waitcnt lgkmcnt(0)')
    for ht in range(2):
        for jj in range(8): pv(3, jj, ht)
    PKO = 192
    for ht in range(2):
        for r in range(4):
            o = PKO + 16*ht + 4*r
            for p in range(4):
                a(f'v_cvt_pk_bf16_f32 v{o+p}, v{oacc(ht, 2*p)+r}, v{oacc(ht, 2*p+1)+r}')
            for p in range(4):
                a(f'v_and_or_b32 v{o+p}, v{o+p}, s26, v{TG+p}')
            vm.op(f'buffer_store_dwordx4 {vr(o)}, v11, {WS}, s25 offen sc1')
            if not (ht == 1 and r == 3):
                a(f's_add_u32 s25, s25, {131072 if r < 3 else 13*131072}')
    if P['stat_step'] >= 4: stats_store()
    stamp(7)
    UT = 64; G = 96; T = 128; D = 160; WT = 20; XO = 24
    vm.wait(40)
    for jj in range(8):
        transpose_tile(UT+4*jj, UV, jj)
    a(f'''
    v_bfe_u32 v3, v0, 2, 2
    v_and_b32 v4, 3, v0
    v_lshlrev_b32 v1, 7, v4
    v_lshl_add_u32 v1, v3, 11, v1
    v_lshl_add_u32 v1, v9, 9, v1
    s_lshr_b32 s26, s4, 4
    s_and_b32 s27, s5, 3
    ''')
    sum_terms('s25', [('s26', 13), ('s27', 4)], OST)
    a(f'''
    v_lshlrev_b32 v4, 4, v4
    v_lshl_add_u32 v2, v3, 13, v4
    v_lshl_add_u32 v2, v9, 11, v2
    v_mul_u32_u24 v5, 20, v3
    v_add_lshl_u32 v5, v5, v9, 2
    s_lshl_b32 s26, s3, 11
    s_add_u32 s26, s26, 0x24000
    v_lshl_add_u32 v6, v0, 4, s26
    ''')
    sum_terms('s27', [('s4', 15), ('s3', 6)], OP)
    a(f'''
    s_mov_b32 s7, 0
    L_U2p:
    buffer_load_dwordx4 v[12:15], v1, {WS}, s25 offen sc1
    buffer_load_dwordx4 v[16:19], v1, {WS}, s25 offen offset:64 sc1
    s_waitcnt vmcnt(0)
    v_xor_b32 v8, s24, v14
    v_bitop3_b32 v8, v15, s24, v8 bitop3:0xbe
    v_bitop3_b32 v8, v18, s24, v8 bitop3:0xbe
    v_bitop3_b32 v8, v19, s24, v8 bitop3:0xbe
    ''')
    poll_tail(8, 'L_U2p', mask=None)
    def op_loads():
        for k in range(8):
            a(f'buffer_load_dwordx4 {vr(G+4*k)}, v2, {WS}, s27 offen offset:{256*k} sc1')
    op_loads()
    stamp(8)
    a('v_max_f32 v8, v12, v16')
    allreduce_quad('v_max_f32', 8)
    allreduce_rows('v_max_f32', 8, 14)
    a('''
    v_sub_f32 v12, v12, v8
    v_sub_f32 v16, v16, v8
    v_exp_f32 v12, v12
    v_exp_f32 v16, v16
    v_mul_f32 v8, v12, v13
    v_fmac_f32 v8, v16, v17
    ''')
    allreduce_quad('v_add_f32', 8)
    allreduce_rows('v_add_f32', 8, 14)
    a('''
    v_rcp_f32 v8, v8
    v_mul_f32 v12, v12, v8
    v_mul_f32 v16, v16, v8
    v_cvt_pk_bf16_f32 v12, v12, v16
    ''')
    for p in range(4):
        a(f'v_mov_b32_dpp v{WT+p}, v12 quad_perm:[{p},{p},{p},{p}] row_mask:0xf bank_mask:0xf')
    a('s_mov_b32 s7, 0\ns_branch L_U2c\nL_U2g:')
    op_loads()
    a.label('L_U2c')
    for k in range(8):
        a(f's_waitcnt vmcnt({7-k})')
        strip4(8, G+4*k, k == 0, tags=TG)
    poll_tail(8, 'L_U2g', mask=0x10001)
    stamp(9)
    unit_mfma(D, WT, T, G, False)
    for p in range(4):
        a(f'v_cvt_pk_bf16_f32 v{12+p}, v{D+8*p}, v{D+8*p+4}')
        a(f'ds_bpermute_b32 v{XO+p}, v5, v{12+p}')
    a('s_waitcnt lgkmcnt(0)')
    D2 = 192
    for jj in range(8):
        a(f'v_mfma_f32_16x16x32_bf16 {vr(D2+4*jj)}, {vr(XO)}, {vr(UT+4*jj)}, 0')
    for e in range(8):
        a(f'v_mov_b32 v{T+e}, v{D2+4*e}')
        if e == 3: a(f'ds_write_b128 v6, {vr(T)}')
    a(f'''
    ds_write_b128 v6, {vr(T+4)} offset:1024
    s_waitcnt lgkmcnt(0)
    s_barrier                              ; B4
    ''')
    stamp(10)
    if diag: a('s_mov_b32 s54, s7\ns_mov_b32 s55, 0')
    a('s_branch L_done')
    a.label('L_U3')
    a('v_lshlrev_b32 v2, 4, v0')
    for f in range(1, 8):
        a(f'v_xor_b32 v{24+f}, {f*32}, v2')
    a(f'''
    s_sub_u32 s28, s3, 4                  ; k = 0..3
    s_lshr_b32 s26, s4, 4
    s_lshr_b32 s27, s4, 5                 ; b
    s_waitcnt lgkmcnt(0)
    ''')
    epoch_issue()
    srd(16, PT['w_o'], 0x400000)
    tlb_warm(14)
    sum_terms('s96', [('s26', 11), ('s28', 9)], QFLAG)
    sum_terms('s97', [('s27', 15), ('s28', 13)], QABS)
    sum_terms('s29', [('s28', 13)], 0x20000)
    sum_terms('s25', [('s4', 15), ('s28', 8)], 0)
    sum_terms('s98', [('s5', 13), ('s28', 10), ('s6', 8)], CTX)
    sum_terms('s99', [('s4', 11)], CTX)
    a(f'''
    v_lshrrev_b32 v4, 4, v0
    v_and_b32 v22, 15, v0
    v_lshlrev_b32 v22, 4, v22
    v_lshl_add_u32 v22, v4, 11, v22       ; W voffset
    v_bfe_u32 v3, v0, 2, 2
    v_and_b32 v5, 3, v0
    v_lshlrev_b32 v5, 4, v5
    v_lshl_add_u32 v7, v3, 11, v5
    v_lshl_add_u32 v7, v4, 6, v7
    s_mov_b32 s100, 1
    s_mov_b32 s101, 0x24000
    v_and_b32 v6, 31, v0
    v_lshlrev_b32 v6, 4, v6
    ''')
    perm_consts()
    epoch_finish()
    if P['local']:
        a('s_cmp_eq_u32 s3, 4\ns_cbranch_scc0 L_U3x')
        xcc_publish(16)
        a.label('L_U3x')
    a(f'''
    s_mov_b32 s7, 0
    L_qf:
    buffer_load_dword v8, v6, {WS}, s96 offen sc1
    s_waitcnt vmcnt(0)
    v_xor_b32 v8, s24, v8
    ''')
    poll_tail(8, 'L_qf', mask=None)
    stamp(1)
    for k in range(8):
        if (k & 3) == 0: a('s_mov_b32 m0, s29')
        a(f'buffer_load_dwordx4 v{24+k if k else 2}, {WS}, s97 offen offset:{(k&3)*1024} sc1 lds')
        if k == 3: a('s_add_u32 s97, s97, 4096\ns_add_u32 s29, s29, 4096')
    if P['local']: xl = xcc_issue(16, 1)
    a('s_waitcnt vmcnt(0)')
    stamp(2)
    a('s_barrier                              ; B1\ns_barrier                              ; B2')
    for e in range(8):
        a(f'buffer_load_dwordx4 {vr(32+4*e)}, v22, {SW}, s25 offen offset:{(e&1)*1024} {NT}')
        if (e & 1) and e < 7: a('s_add_u32 s25, s25, 0x2000')
        if e == 3: a('s_barrier                              ; B3')
    if P['local']:
        a(xl)
        a(f'buffer_load_dwordx4 v[24:27], v2, {WS}, s99 offen sc1')
        a(f'buffer_load_dwordx4 v[24:27], v2, {WS}, s99 offen offset:1024 sc1')
    a('s_waitcnt vmcnt(0)')
    stamp(3)
    if P['local']: xcc_finish(16)
    for jj in range(8):
        transpose_tile(64+4*jj, 32, jj)
    a('s_branch L_OP')
    a.label('L_done')
    if P['cal']:
        wg, wv, idx, mult = map(int, P['cal'].split(','))
        a(f'''
        s_cmp_eq_u32 s2, {wg}
        s_cbranch_scc0 L_exit
        s_cmp_eq_u32 s3, {wv}
        s_cbranch_scc0 L_exit
        s_waitcnt lgkmcnt(0)
        s_sub_u32 s25, s{32+2*idx}, s32
        s_mul_i32 s25, s25, {mult}
        s_add_u32 s25, s25, 6000
        s_min_u32 s25, s25, 100000
        L_cal:
        s_memrealtime s[26:27]
        s_waitcnt lgkmcnt(0)
        s_sub_u32 s26, s26, s32
        s_cmp_lt_u32 s26, s25
        s_cbranch_scc1 L_cal
        ''')
    elif diag:
        a(f'''
        s_waitcnt lgkmcnt(0)
        s_lshl_b32 s25, s2, 3
        s_add_u32 s25, s25, s3
        s_lshl_b32 s25, s25, 7
        s_add_u32 s25, s25, {hex(STAMP)}
        s_mov_b64 exec, -1
        ''')
        for k in range(32): a(f'v_writelane_b32 v4, s{32+k}, {k}')
        a(f'''v_lshlrev_b32 v0, 2, v0
        s_mov_b32 exec_hi, 0
        buffer_store_dword v4, v0, {WS}, s25 offen''')
    a.label('L_exit')
    a('s_endpgm')
    body, added = hazard.fix(a.text())
    return kernel_file([(NAME + '_kernel', body, 256, 102, 256)], [(NAME + '_kernel', 256, 512, 163840)]), added

def parse(argv):
    P = {}
    for kv in argv:
        k, v = kv.split('=')
        if v in ('True', 'False'): v = (v == 'True')
        else:
            try: v = int(v, 0)
            except ValueError: pass
        P[k] = v
    return P
if __name__ == '__main__':
    out = sys.argv[1]
    txt, added = gen(parse(sys.argv[2:]))
    open(out, 'w').write(txt)
    print(out, 'nop states added', added)
```

```python
import sys, struct, math
from asmlib import *
import hazard

DEF = dict(
    nt='nt',
    diag=False,
    maxpoll=20000,
    kv_depth=7,
    x1_at=10,
    kv_first=7, kv_nfirst=0,
    v_depth=16,
    v_in_s=0,
    wq_depth=8,
    ost='x',
    xt='dbg',
    v_pre=8,
    wo_pre=8,
    c_depth=8,
    c_first=3,
    c_nfirst=6,
    a0=True,
    flag_at='P2',
    stat_step=2,
    b_sched='0,8,0,4,4',
    altmask=7,
    codepf=True,
    tlbwarm=True,
    cal=None,
    noB=False,
    b0_at=28,
    sleep=0,
    o_gate=0,
    forceg=False,
    noO=False,
)

def f2u(x): return struct.unpack('<I', struct.pack('<f', x))[0]
def vr(a, n=4): return f'v[{a}:{a+n-1}]' if n > 1 else f'v{a}'

class VM:
    def __init__(self, a): self.a = a; self.n = 0; self.done = 0
    def op(self, s): self.a(s); self.n += 1; return self.n
    def wait(self, oid, extra=''):
        if oid > self.done:
            self.a(f's_waitcnt vmcnt({self.n - oid}) {extra}'); self.done = oid
        elif extra: self.a(f's_waitcnt {extra}')
    def pace(self, depth):
        self.wait(self.n - (depth - 1))

def gen(P):
    P = {**DEF, **P}
    NT = P['nt']
    EPOCH = 0
    PAD = 0x800
    QFLAG = 0x2000
    AST = 0xC000
    OST = 0x10000
    QABS = 0x20000
    XQ1 = 0x40000
    XQ2 = 0x80000
    XO = 0xC0000
    XC = 0x100000
    FIN = 0x140000
    GD = 0x200000
    OP = 0x402000
    STAMP = 0x8000000
    CSC = f2u(math.log2(math.e) / math.sqrt(128.0))
    a = Asm()
    diag = P['diag']
    def stamp(k):
        if diag: a(f's_memrealtime s[{32+2*k}:{33+2*k}]')
    def rawstamp(k, s):
        if diag: a(f's_mov_b32 s{32+2*k}, {s}\ns_mov_b32 s{33+2*k}, 0')
    WS = 's[12:15]'; SW = 's[16:19]'; S2 = 's[20:23]'; S3 = 's[88:91]'
    def srd(r, ptr, size):
        a(f's_mov_b32 s{r}, s{ptr}\ns_mov_b32 s{r+1}, s{ptr+1}\ns_mov_b32 s{r+2}, {hex(size)}\ns_mov_b32 s{r+3}, 0x20000')
    def srdp(r, ptr):
        a(f's_mov_b32 s{r}, s{ptr}\ns_mov_b32 s{r+1}, s{ptr+1}')
    PT = dict(A_x=64, K=66, V=68, wq=70, wo=72, B_x=74, ckv=76, w_q=78, w_uk=80, w_uv=82, w_o=84, out=86)
    def epoch_issue():
        a(f's_load_dword s24, s[12:13], {hex(EPOCH)}')
    def epoch_finish():
        a('''s_waitcnt lgkmcnt(0)
        s_add_u32 s24, s24, 0x01010101
        s_and_b32 s8, s24, 0xff
        s_bfe_u32 s9, s24, 0x80008
        s_bfe_u32 s10, s24, 0x80010
        s_lshr_b32 s11, s24, 24''')
    def sum_terms(dst, terms, const):
        first = True
        for (src, sh) in terms:
            if first: a(f's_lshl_b32 {dst}, {src}, {sh}'); first = False
            else: a(f's_lshl_b32 s93, {src}, {sh}\ns_add_u32 {dst}, {dst}, s93')
        if const: a(f's_add_u32 {dst}, {dst}, {hex(const)}')
    def transpose_tile(dst, raw, jj):
        w = jj >> 1; sel = 's30' if (jj & 1) == 0 else 's31'
        for p in range(4):
            a(f'v_perm_b32 v{dst+p}, v{raw+(2*p+1)*4+w}, v{raw+(2*p)*4+w}, {sel}')
    def unit_mfma(D, X, T, raw, acc):
        for jj in range(8):
            transpose_tile(T+4*jj, raw, jj)
            if jj >= 1:
                j = jj - 1
                a(f'v_mfma_f32_16x16x32_bf16 {vr(D+4*j)}, {vr(X)}, {vr(T+4*j)}, {vr(D+4*j) if acc else 0}')
        a(f'v_mfma_f32_16x16x32_bf16 {vr(D+28)}, {vr(X)}, {vr(T+28)}, {vr(D+28) if acc else 0}')
    def part_to_lds(D, T, vaddr):
        for e in range(8):
            a(f'v_mov_b32 v{T+e}, v{D+4*e}')
            if e == 3: a(f'ds_write_b128 v{vaddr}, {vr(T)}')
        a(f'ds_write_b128 v{vaddr}, {vr(T+4)} offset:1024')
    def perm_consts():
        a('s_mov_b32 s30, 0x05040100\ns_mov_b32 s31, 0x07060302')
    def tag_regs(TG, t0, t1):
        return f'''v_and_b32 v{t0}, 3, v0
        v_lshlrev_b32 v{t0}, 3, v{t0}
        v_lshrrev_b32 v{t0}, v{t0}, s24
        v_lshlrev_b32 v{t1}, 15, v{t0}
        v_and_b32 v{t0}, 0x55, v{t0}
        v_and_b32 v{t1}, 0x550000, v{t1}
        v_or_b32 v{t0}, v{t0}, v{t1}
        v_and_b32 v{TG}, 0x10001, v{t0}
        v_lshrrev_b32 v{t0}, 2, v{t0}
        v_and_b32 v{TG+1}, 0x10001, v{t0}
        v_lshrrev_b32 v{t0}, 2, v{t0}
        v_and_b32 v{TG+2}, 0x10001, v{t0}
        v_lshrrev_b32 v{t0}, 2, v{t0}
        v_and_b32 v{TG+3}, 0x10001, v{t0}'''
    def strip4(acc, r, first, tags=None):
        for e in range(4):
            a(f'v_xor_b32 v{r+e}, {("s%d" % (8+e)) if tags is None else ("v%d" % (tags+e))}, v{r+e}')
        if first: a(f'v_or_b32 v{acc}, v{r}, v{r+1}')
        else: a(f'v_or3_b32 v{acc}, v{acc}, v{r}, v{r+1}')
        a(f'v_or3_b32 v{acc}, v{acc}, v{r+2}, v{r+3}')
    def poll_tail(acc, lab, cnt='s7', mask=0xff, alt=None):
        done = a.newlabel('Lpd')
        if mask is not None: a(f'v_and_b32 v{acc}, {hex(mask)}, v{acc}')
        a(f'''v_cmp_ne_u32 vcc, 0, v{acc}
        s_cbranch_vccz {done}
        s_add_u32 {cnt}, {cnt}, 1''')
        if P['sleep']: a(f's_sleep {P["sleep"]}')
        if alt:
            cur, loc = alt
            a(f'''s_and_b32 s92, {cnt}, {P['altmask']}
            s_cmp_eq_u32 s92, {P['altmask']}
            s_cselect_b32 s92, s95, 0
            s_add_u32 {cur}, {loc}, s92''')
        a(f'''s_cmp_lt_u32 {cnt}, {P['maxpoll']}
        s_cbranch_scc1 {lab}
        {done}:''')
    def allreduce_rows(op, x, t):
        a(f'''v_mov_b32 v{t}, v{x}
        v_permlane32_swap_b32 v{x}, v{t}
        {op} v{x}, v{x}, v{t}
        v_mov_b32 v{t}, v{x}
        v_permlane16_swap_b32 v{x}, v{t}
        {op} v{x}, v{x}, v{t}''')
    def allreduce_quad(op, x):
        a(f'''{op}_dpp v{x}, v{x}, v{x} quad_perm:[1,0,3,2] row_mask:0xf bank_mask:0xf
        {op}_dpp v{x}, v{x}, v{x} quad_perm:[2,3,0,1] row_mask:0xf bank_mask:0xf''')
    def diag_mfma8(W, Q, D, ACC, t=0, side=None):
        for e in range(8):
            a(f'v_mfma_f32_16x16x32_bf16 {vr(D+4*e)}, {vr(W+4*e)}, {vr(Q)}, 0')
        if side: side()
        rs = [r for r in range(4) if r != t]
        for n, r in enumerate(rs):
            for e in range(8):
                src1 = D+4*e+t if n == 0 else ACC+e
                a(f'v_add_f32_dpp v{ACC+e}, v{D+4*e+r}, v{src1} quad_perm:[{r},{r},{r},{r}] row_mask:0xf bank_mask:0xf')
    def tlb_warm(vt):
        if not P['tlbwarm']: return
        a(f'''v_lshlrev_b32 v{vt}, 21, v0
        s_mov_b32 s92, {hex(PAD)}
        s_mov_b64 exec, 0x1f
        buffer_load_dword v{vt+1}, v{vt}, {WS}, s92 offen
        s_mov_b64 exec, -1''')
    def xt_publish(vt):
        if P['xt'] == 'none': return
        l = a.newlabel('Lxt')
        a(f'''s_cmp_eq_u32 s28, 2
        s_cbranch_scc0 {l}
        s_getreg_b32 s95, hwreg(HW_REG_XCC_ID, 0, 4)
        s_and_b32 s92, s2, 7
        s_lshl_b32 s92, s92, 5
        s_lshr_b32 s93, s2, 3
        s_add_u32 s92, s92, s93
        s_add_u32 s95, s95, 1
        v_mov_b32 v{vt}, s92
        v_mov_b32 v{vt+1}, s95
        s_mov_b64 exec, 1
        global_store_byte v{vt}, v{vt+1}, s[88:89]
        {"" if P['xt'] == 'notouch' else f"global_load_ubyte v{vt+2}, v{vt}, s[88:89] sc1"}
        s_mov_b64 exec, -1
        {l}:''')
    def xt_issue(vt):
        if P['xt'] == 'none': return
        a(f'''s_and_b32 s92, s2, 7
        s_lshl_b32 s92, s92, 5
        v_and_b32 v{vt}, 7, v0
        v_lshl_add_u32 v{vt}, v{vt}, 2, s92
        global_load_dword v{vt}, v{vt}, s[88:89] sc1''')
    def xt_finish(vt):
        if P['xt'] == 'none':
            a('s_mov_b32 s95, 0'); return
        a(f'''s_getreg_b32 s95, hwreg(HW_REG_XCC_ID, 0, 4)
        s_add_u32 s95, s95, 1
        s_mul_i32 s95, s95, 0x01010101
        v_cmp_ne_u32 vcc, s95, v{vt}
        s_cmp_eq_u64 vcc, 0
        s_cselect_b32 s95, {hex(GD) if P['forceg'] else 0}, {hex(GD)}''')
    def call_pub():
        a('s_swappc_b64 s[90:91], s[96:97]')
    def pub_addr():
        l = a.newlabel('Lpc')
        a(f'''s_getpc_b64 s[96:97]
        {l}:
        s_add_u32 s96, s96, L_PUB-{l}
        s_addc_u32 s97, s97, {"-1" if pub_addr.back else "0"}''')
    pub_addr.back = False

    stamp(0)
    a(f'''
    s_cmp_ge_u32 s2, 256
    s_cbranch_scc1 L_exit
    s_load_dwordx2 s[12:13], s[0:1], 104
    s_load_dwordx16 s[64:79], s[0:1], 0
    s_load_dwordx8 s[80:87], s[0:1], 64
    s_load_dwordx2 s[88:89], s[0:1], 96
    v_lshrrev_b32 v1, 6, v0
    v_and_b32 v0, 63, v0
    v_readfirstlane_b32 s3, v1
    s_and_b32 s4, s2, 7
    s_lshl_b32 s4, s4, 4
    s_bfe_u32 s5, s2, 0x40003
    s_add_u32 s4, s4, s5          ; i = xcd*16 + y
    s_lshr_b32 s5, s4, 2          ; h
    s_and_b32 s6, s4, 3           ; quarter
    s_mov_b32 s14, 0x10000000
    s_mov_b32 s15, 0x20000
    s_and_b32 s28, s3, 3
    ''')
    if diag:
        for k in range(1, 16): a(f's_mov_b64 s[{32+2*k}:{33+2*k}], 0')
    a('''
    s_cmp_ge_u32 s2, 128
    s_cbranch_scc1 L_B
    s_cmp_ge_u32 s3, 4
    s_cbranch_scc1 L_T4
    ''')
    X = 16; RAW = 32; WT = 64; G = 96; UK = 128; D = 160; ACC = 192; PK = 200; XO_ = 24; TG = 28
    LPA = 0x1000; LPB = 0x24000
    a(f'''
    v_lshrrev_b32 v12, 4, v0              ; g
    v_and_b32 v13, 15, v0                 ; n
    v_lshlrev_b32 v1, 18, v12
    v_lshl_add_u32 v1, v13, 4, v1         ; W voffset = g*32*8192 + n*16
    v_lshrrev_b32 v14, 2, v13             ; b / rho
    v_lshlrev_b32 v2, 6, v12
    v_lshl_add_u32 v2, v14, 10, v2        ; x voffset = b*1024 + g*64
    s_lshl_b32 s27, s6, 20
    s_lshl_b32 s26, s5, 8
    s_add_u32 s27, s27, s26
    s_lshl_b32 s25, s3, 16
    s_add_u32 s25, s25, s27               ; W soffset
    s_lshl_b32 s26, s6, 8
    s_lshl_b32 s29, s3, 4
    s_add_u32 s26, s26, s29               ; x soffset
    s_mov_b32 s18, 0x400000
    s_mov_b32 s19, 0x20000
    s_movk_i32 s22, 0x1000
    s_mov_b32 s23, 0x20000
    s_movk_i32 s29, 0x2000
    s_waitcnt lgkmcnt(0)
    ''')
    srdp(16, PT['w_q']); srdp(20, PT['B_x'])
    stamp(13)
    def gemv_loads():
        a(f'buffer_load_dwordx4 {vr(X)}, v2, {S2}, s26 offen')
        for k in range(8):
            a(f'buffer_load_dwordx4 {vr(RAW+4*k)}, v1, {SW}, s25 offen {NT}')
            if k < 7: a('s_add_u32 s25, s25, s29')
    gemv_loads()
    epoch_issue()
    a(f'''
    v_and_b32 v15, 3, v0
    v_lshlrev_b32 v15, 4, v15             ; k*16
    v_lshl_add_u32 v7, v12, 6, v15        ; g*64 + k*16
    v_lshl_add_u32 v4, v14, 16, v7
    s_lshl_b32 s92, s3, 18
    s_add_u32 s27, s27, s92
    ''')
    srdp(16, PT['w_uk'])
    if P['a0']: a('s_barrier                              ; A0')
    stamp(14)
    for k in range(8):
        a(f'buffer_load_dwordx4 {vr(UK+4*k)}, v4, {SW}, s27 offen {NT}')
        if k < 7: a('s_add_u32 s27, s27, s29')
    stamp(1)
    perm_consts()
    a(f'''
    v_lshl_add_u32 v7, v14, 8, v7
    v_lshlrev_b32 v5, 4, v0
    s_lshl_b32 s92, s3, 11
    s_add_u32 s92, s92, {hex(LPA)}
    v_add_u32 v3, s92, v5
    s_lshl_b32 s92, s3, 6
    v_lshl_add_u32 v6, v14, 8, v15
    v_lshl_add_u32 v6, v12, 2, v6
    v_add_u32 v6, s92, v6
    v_lshlrev_b32 v10, 4, v12
    v_lshl_add_u32 v10, v14, 8, v10
    v_add_u32 v10, s92, v10
    v_lshrrev_b32 v11, 2, v0
    v_lshlrev_b32 v11, 4, v11
    v_mov_b32 v20, 1.0
    s_mov_b32 s95, {hex(GD)}
    s_mov_b32 s94, 1                      ; pass
    ''')
    sum_terms('s99', [('s5', 13), ('s3', 11)], XQ1)
    epoch_finish()
    a('s_waitcnt vmcnt(8)')
    stamp(2)
    a.label('L_GEMV')
    unit_mfma(D, X, WT, RAW, False)
    part_to_lds(D, G, 3)
    a('s_cmp_eq_u32 s94, 0\ns_cbranch_scc1 L_U2b')
    a.label('L_CON')
    a(f'''
    s_mov_b32 s7, 0
    s_mov_b32 s27, s99
    s_cmp_lt_u32 s94, 3
    s_waitcnt lgkmcnt(0)
    s_barrier                              ; P1 / X1 / A5 / B4
    buffer_load_dwordx4 {vr(G)}, v5, {WS}, s27 offen sc1
    buffer_load_dwordx4 {vr(G+4)}, v5, {WS}, s27 offen offset:1024 sc1
    s_cbranch_scc0 L_CONx
    s_branch L_CONc
    L_CONp:
    buffer_load_dwordx4 {vr(G)}, v5, {WS}, s27 offen sc1
    buffer_load_dwordx4 {vr(G+4)}, v5, {WS}, s27 offen offset:1024 sc1
    L_CONc:
    s_waitcnt vmcnt(1)
    ''')
    strip4(8, G, True)
    a('s_waitcnt vmcnt(0)')
    strip4(8, G+4, False)
    poll_tail(8, 'L_CONp', alt=('s27', 's99'))
    if diag:
        a(f'''s_memrealtime s[92:93]
        s_cmp_eq_u32 s94, 1
        s_waitcnt lgkmcnt(0)
        s_cselect_b32 s38, s92, s38
        s_cselect_b32 s39, s93, s39
        s_cselect_b32 s52, s7, s52
        s_cmp_eq_u32 s94, 2
        s_cselect_b32 s44, s92, s44
        s_cselect_b32 s45, s93, s45
        s_cselect_b32 s54, s7, s54
        s_cmp_ge_u32 s94, 3
        s_cselect_b32 s48, s92, s48
        s_cselect_b32 s49, s93, s49
        s_cselect_b32 s56, s7, s56''')
    for e in range(8): a(f'v_mul_f32 v{G+e}, v{G+e}, v20')
    for q in range(4): a(f'v_permlane32_swap_b32 v{G+q}, v{G+4+q}')
    for q in range(4): a(f'v_add_f32 v{G+q}, v{G+q}, v{G+4+q}')
    for q in range(2): a(f'v_permlane16_swap_b32 v{G+q}, v{G+2+q}')
    for q in range(2): a(f'v_add_f32 v{G+q}, v{G+q}, v{G+2+q}')
    a(f'''
    s_cmp_ge_u32 s94, 3
    v_cvt_pk_bf16_f32 v{G}, v{G}, v{G+1}
    s_cbranch_scc1 L_PROJ
    ds_write_b32 v6, v{G}
    s_cmp_eq_u32 s94, 2
    s_waitcnt lgkmcnt(0)
    s_barrier                              ; P2 / A3
    s_cbranch_scc1 L_P3
    ds_read_b128 {vr(XO_)}, v7
    s_mov_b32 s92, 0x10000
    s_waitcnt lgkmcnt(0)
    ''')
    diag_mfma8(UK, XO_, D, ACC, 0)
    for p in range(4):
        a(f'''v_add_u32 v{ACC+2*p}, s92, v{ACC+2*p}
        v_add_u32 v{ACC+2*p+1}, s92, v{ACC+2*p+1}
        v_perm_b32 v{PK+p}, v{ACC+2*p+1}, v{ACC+2*p}, s31''')
    a(f'''
    s_mov_b32 exec_lo, 0x11111111
    s_mov_b32 exec_hi, 0x11111111
    ds_write_b128 v10, {vr(PK)} offset:1024
    s_mov_b64 exec, -1
    s_waitcnt lgkmcnt(0)
    s_barrier                              ; P3
    ''')
    stamp(4)
    a(f'''
    v_add_u32 v3, 0x2000, v3
    v_lshl_add_u32 v5, v14, 11, v15
    v_lshl_add_u32 v5, v12, 8, v5
    v_lshlrev_b32 v6, 4, v13
    v_lshl_add_u32 v6, v12, 2, v6
    s_lshl_b32 s92, s3, 8
    v_add_u32 v6, s92, v6
    s_lshr_b32 s26, s4, 4                 ; g_kv
    s_bfe_u32 s27, s4, 0x20002            ; b
    s_mov_b32 s94, 2
    ''')
    sum_terms('s99', [('s26', 15), ('s3', 13), ('s27', 6)], XQ2)
    a('s_branch L_CON')
    a.label('L_P3')
    stamp(5)
    xt_issue(22)
    srdp(16, PT['wo'])
    a(f'''
    v_lshlrev_b32 v1, 4, v13
    v_lshl_add_u32 v1, v12, 11, v1        ; W voffset = g*2048 + n*16
    ''')
    sum_terms('s25', [('s5', 17), ('s3', 15), ('s6', 8)], 0)
    def wproj_load(e, srdn=SW, sreg='s25', v=1):
        a(f'buffer_load_dwordx4 {vr(RAW+4*e)}, v{v}, {srdn}, {sreg} offen offset:{(e&1)*1024} {NT}')
        if (e & 1) and e < 7: a(f's_add_u32 {sreg}, {sreg}, 0x2000')
    for e in range(P['wo_pre']): wproj_load(e)
    a(f'''
    v_lshlrev_b32 v5, 4, v0
    s_mov_b32 s94, 3
    ''')
    sum_terms('s99', [('s5', 13), ('s3', 11)], XO)
    sum_terms('s98', [('s5', 8)], AST)
    a(f's_waitcnt vmcnt({P["wo_pre"]})')
    xt_finish(22)
    a('s_barrier                              ; A4')
    for e in range(P['wo_pre'], 8): wproj_load(e)
    a(f'''
    buffer_load_dwordx4 v[12:15], v11, {WS}, s98 offen sc1
    s_branch L_CON
    ''')
    a.label('L_CONx')
    a('s_waitcnt vmcnt(2)')
    stamp(7)
    for jj in range(8):
        transpose_tile(WT+4*jj, RAW, jj)
    a(f'''
    s_cmp_eq_u32 s94, 3
    s_cbranch_scc0 L_CONc
    s_mov_b32 s26, s98
    s_branch L_CONs1
    L_CONs:
    buffer_load_dwordx4 v[12:15], v11, {WS}, s26 offen sc1
    s_waitcnt vmcnt(0)
    L_CONs1:
    v_xor_b32 v8, s24, v14
    v_bitop3_b32 v8, v15, s24, v8 bitop3:0xbe
    ''')
    poll_tail(8, 'L_CONs', mask=None, alt=('s26', 's98'))
    a('v_mov_b32 v8, v12')
    allreduce_rows('v_max_f32', 8, 14)
    a('''
    v_sub_f32 v12, v12, v8
    v_exp_f32 v12, v12
    v_mul_f32 v8, v12, v13
    ''')
    allreduce_rows('v_add_f32', 8, 14)
    a(f'''
    v_rcp_f32 v8, v8
    s_mov_b32 s7, 0
    v_mul_f32 v20, v12, v8
    s_branch L_CONc
    ''')
    a.label('L_PROJ')
    a('s_nop 1')
    for p in range(4):
        a(f'v_mov_b32_dpp v{XO_+p}, v{G} quad_perm:[{p},{p},{p},{p}] row_mask:0xf bank_mask:0xf')
    for jj in range(8):
        a(f'v_mfma_f32_16x16x32_bf16 {vr(D+4*jj)}, {vr(XO_)}, {vr(WT+4*jj)}, 0')
    part_to_lds(D, G, 3)
    a('''
    s_waitcnt lgkmcnt(0)
    s_barrier                              ; A6 / B5
    ''')
    stamp(9)
    a('s_branch L_done')
    PB = 208
    a.label('L_PUB')
    pub_addr.back = True
    a(f'''
    s_barrier
    ds_read_b128 {vr(PB)}, v3
    ds_read_b128 {vr(PB+4)}, v3 offset:2048
    ds_read_b128 {vr(PB+8)}, v3 offset:4096
    ds_read_b128 {vr(PB+12)}, v3 offset:6144
    s_cmp_lt_u32 s28, 2
    s_waitcnt lgkmcnt(2)
    ''')
    for e in range(4): a(f'v_add_f32 v{PB+e}, v{PB+e}, v{PB+4+e}')
    a('s_waitcnt lgkmcnt(0)')
    for e in range(4): a(f'v_add_f32 v{PB+8+e}, v{PB+8+e}, v{PB+12+e}')
    for e in range(4): a(f'v_add_f32 v{PB+e}, v{PB+e}, v{PB+8+e}')
    for e in range(4): a(f'v_and_or_b32 v{PB+16+e}, v{PB+e}, v9, s{8+e}')
    a(f'''
    s_cbranch_scc0 L_PUBg
    {"s_mov_b64 exec, 0" if P['forceg'] else ""}
    buffer_store_dwordx4 {vr(PB+16)}, v7, {WS}, s98 offen
    {"s_mov_b64 exec, -1" if P['forceg'] else ""}
    s_nop 0
    s_setpc_b64 s[90:91]
    L_PUBg:
    s_cmp_eq_u32 s95, 0
    s_cbranch_scc1 L_PUBr
    buffer_store_dwordx4 {vr(PB+16)}, v7, {WS}, s98 offen sc1
    s_nop 0
    L_PUBr:
    s_setpc_b64 s[90:91]
    ''')
    def pub_setup(lp):
        a(f'''
        s_and_b32 s101, s28, 1
        s_lshl_b32 s101, s101, 10
        s_add_u32 s92, s101, {hex(lp)}
        v_lshl_add_u32 v3, v0, 4, s92
        s_lshr_b32 s92, s28, 1
        s_lshl_b32 s92, s92, 21
        s_add_u32 s101, s101, s92
        v_mov_b32 v9, 0xffffff00
        v_bfe_u32 v7, v0, 2, 2
        v_lshlrev_b32 v7, 11, v7
        v_lshrrev_b32 v8, 4, v0
        v_lshl_add_u32 v7, v8, 6, v7
        v_and_b32 v8, 3, v0
        v_lshl_add_u32 v7, v8, 4, v7          ; dq*2048 + b*64 + c*16
        ''')
        pub_addr()
    assert GD == 1 << 21
    a.label('L_T4')
    KR = 32; VR = 96; Q = 28; D = 160; ACC = 192; T = 208; PP = 240
    a(f'''
    v_and_b32 v10, 15, v0
    v_lshlrev_b32 v10, 7, v10
    v_lshrrev_b32 v4, 4, v0
    v_lshl_add_u32 v10, v4, 18, v10
    s_lshl_b32 s99, s4, 11
    s_add_u32 s99, s99, {hex(XQ1)}
    s_cmp_eq_u32 s28, 0
    s_cselect_b32 exec_lo, -1, 0
    s_mov_b32 exec_hi, 0
    s_waitcnt lgkmcnt(0)
    buffer_load_dword v12, v10, {WS}, s99 offen sc1
    s_mov_b64 exec, -1
    ''')
    xt_publish(16)
    epoch_issue()
    if P['a0']: a('s_barrier                              ; A0')
    pub_setup(LPA)
    sum_terms('s98', [('s5', 13), ('s6', 8), ('s101', 0)], XQ1)
    epoch_finish()
    a('s_mov_b32 s95, 0')
    call_pub()
    stamp(1)
    xt_issue(16)
    a(f'''
    v_mov_b32 v14, s24
    v_lshlrev_b32 v13, 12, v0
    v_lshlrev_b32 v2, 4, v0               ; V voffset
    v_and_b32 v11, 15, v0
    v_lshlrev_b32 v11, 4, v11
    v_lshl_add_u32 v11, v4, 15, v11
    s_lshl_b32 s26, s28, 2
    s_or_b32 s26, s26, s6
    ''')
    sum_terms('s29', [('s5', 7)], QFLAG)
    sum_terms('s27', [('s4', 8)], QABS)
    def qflag():
        a(f'''s_cmp_eq_u32 s26, 0
        s_cselect_b64 exec, 0xff, 0
        buffer_store_dword v14, v13, {WS}, s29 offen sc1
        s_mov_b64 exec, -1''')
    a(tag_regs(24, 21, 22))
    a('s_waitcnt vmcnt(0)')
    xt_finish(16)
    a(f'''
    s_cmp_lg_u32 s95, 0
    s_cselect_b32 s92, s28, 0
    s_cmp_ge_u32 s92, 2
    s_cbranch_scc0 L_T4g
    buffer_store_dwordx4 {vr(PB+16)}, v7, {WS}, s98 offen sc1
    L_T4g:
    s_barrier                              ; P2
    ''')
    if P['flag_at'] == 'P2': qflag()
    a(f'''
    s_mov_b32 s92, 0xfffefffe
    s_cmp_eq_u32 s28, 3
    s_barrier                              ; P3
    s_cbranch_scc0 L_T4q
    ds_read_b128 v[16:19], v2 offset:1024
    s_waitcnt lgkmcnt(0)
    v_and_or_b32 v16, v16, s92, v24
    v_and_or_b32 v17, v17, s92, v25
    v_and_or_b32 v18, v18, s92, v26
    v_and_or_b32 v19, v19, s92, v27
    buffer_store_dwordx4 v[16:19], v11, {WS}, s27 offen sc1
    L_T4q:
    ''')
    if P['flag_at'] == 'P3': qflag()
    a(f'''
    s_barrier                              ; A1
    v_bfe_u32 v6, v0, 2, 2
    v_lshlrev_b32 v5, 4, v8
    v_lshl_add_u32 v1, v4, 6, v5
    v_lshl_add_u32 v1, v6, 8, v1
    s_lshr_b32 s26, s4, 4                 ; g_kv
    s_bfe_u32 s27, s4, 0x20002            ; b
    v_lshlrev_b32 v21, 3, v6
    v_add_u32 v21, 0x800, v21
    s_lshl_b32 s92, s28, 5
    v_add_u32 v20, s92, v21
    v_mov_b32 v23, 0
    ''')
    sum_terms('s25', [('s27', 23), ('s26', 20), ('s6', 16), ('s28', 14)], 3072*256)
    srd(16, PT['K'], 0x2000000)
    srd(20, PT['V'], 0x2000000)
    perm_consts()
    stamp(2)
    vm = VM(a); vm.n = 2
    dp = P['kv_depth']
    a(f'''
    s_cmp_eq_u32 s28, 1
    s_cbranch_scc0 L_T4t
    s_mov_b32 exec_lo, 0
    buffer_load_dword v12, v10, {WS}, s99 offen sc1
    s_lshl_b32 s92, s5, 8
    s_add_u32 s92, s92, {hex(AST)}
    s_mov_b64 exec, 3
    buffer_load_dword v12, v10, {WS}, s92 offen sc1
    s_mov_b64 exec, -1
    L_T4t:
    ''')
    vm.n += 2
    kid = []
    def kv_load(k, d):
        vm.pace(d)
        if k < 16:
            kid.append(vm.op(f'buffer_load_dwordx4 {vr(KR+4*k)}, v1, {SW}, s25 offen offset:{(k&3)*1024} {NT}'))
        else:
            kid.append(vm.op(f'buffer_load_dwordx4 {vr(VR+4*(k-16))}, v2, {S2}, s25 offen offset:{(k&3)*1024} {NT}'))
        if (k & 3) == 3 and k != 31:
            a(f's_add_u32 s25, s25, 4096' if k != 15 else 's_sub_u32 s25, s25, 12288')
    nk = 16 + P['v_pre']
    for k in range(nk):
        kv_load(k, P['kv_first'] if k < P['kv_nfirst'] else dp)
        if k == 15: stamp(3)
    rest = list(range(nk, 32))
    def kv_more(n):
        for _ in range(n):
            if rest: kv_load(rest.pop(0), P['v_depth'])
    stamp(4)
    sum_terms('s100', [('s26', 10), ('s28', 8), ('s6', 6), ('s27', 4)], AST)
    sum_terms('s98', [('s26', 15), ('s6', 8), ('s27', 6), ('s101', 0)], XO)
    a(f'''
    v_lshrrev_b32 v7, 2, v0
    v_lshl_add_u32 v7, v7, 11, v5
    s_lshl_b32 s92, s28, 11
    s_add_u32 s92, s92, {hex(LPA)}
    v_add_u32 v22, s92, v2
    s_mov_b32 s29, {hex(CSC)}
    s_barrier                              ; A3
    ds_read_b128 {vr(Q)}, v1
    ''')
    vm.wait(kid[15], 'lgkmcnt(0)')
    stamp(5)
    per = P['v_in_s']
    diag_mfma8(KR, Q, D, ACC, side=lambda: kv_more(per))
    diag_mfma8(KR+32, Q, D, ACC+8, side=lambda: kv_more(per))
    a(f'v_max3_f32 v12, v{ACC}, v{ACC+1}, v{ACC+2}')
    for e in range(3, 15, 2):
        a(f'v_max3_f32 v12, v12, v{ACC+e}, v{ACC+e+1}')
    a(f'v_max_f32 v12, v12, v{ACC+15}')
    allreduce_rows('v_max_f32', 12, 16)
    kv_more(per)
    a('v_mul_f32 v12, s29, v12')
    for e in range(16):
        a(f'v_fma_f32 v{ACC+e}, v{ACC+e}, s29, -v12')
    for e in range(16):
        a(f'v_exp_f32 v{ACC+e}, v{ACC+e}')
    for e in range(8):
        a(f'v_add_f32 v{T+e}, v{ACC+e}, v{ACC+8+e}')
    for st in (4, 2):
        for e in range(st):
            a(f'v_add_f32 v{T+e}, v{T+e}, v{T+st+e}')
    a(f'v_add_f32 v13, v{T}, v{T+1}')
    allreduce_rows('v_add_f32', 13, 16)
    a(f'''
    s_mov_b64 exec, 0x1111
    ds_write_b64 v20, v[12:13]
    s_mov_b64 exec, -1
    ''')
    kv_more(16)
    a(f'''
    s_waitcnt lgkmcnt(0)
    s_barrier                              ; A4
    ds_read_b64 {vr(T, 2)}, v21
    ds_read_b64 {vr(T+2, 2)}, v21 offset:32
    ds_read_b64 {vr(T+4, 2)}, v21 offset:64
    ds_read_b64 {vr(T+6, 2)}, v21 offset:96
    s_lshl_b32 s92, s28, 2
    s_lshl_b64 s[92:93], 1, s92
    s_add_u32 s29, s100, {hex(GD)}
    s_waitcnt lgkmcnt(0)
    v_max3_f32 v16, v{T}, v{T+2}, v{T+4}
    v_max_f32 v16, v16, v{T+6}
    v_sub_f32 v12, v12, v16
    v_sub_f32 v{T}, v{T}, v16
    v_sub_f32 v{T+2}, v{T+2}, v16
    v_sub_f32 v{T+4}, v{T+4}, v16
    v_sub_f32 v{T+6}, v{T+6}, v16
    v_exp_f32 v12, v12
    v_exp_f32 v{T}, v{T}
    v_exp_f32 v{T+2}, v{T+2}
    v_exp_f32 v{T+4}, v{T+4}
    v_exp_f32 v{T+6}, v{T+6}
    v_mul_f32 v17, v{T}, v{T+1}
    v_fmac_f32 v17, v{T+2}, v{T+3}
    v_fmac_f32 v17, v{T+4}, v{T+5}
    v_fmac_f32 v17, v{T+6}, v{T+7}
    v_mov_b32 v18, s24
    v_mov_b32 v19, s24
    s_mov_b64 exec, s[92:93]
    ''')
    if not P['forceg']: vm.op(f'buffer_store_dwordx4 v[16:19], v23, {WS}, s100 offen')
    a(f'''s_cmp_eq_u32 s95, 0
    s_cbranch_scc1 L_T4s
    buffer_store_dwordx4 v[16:19], v23, {WS}, s29 offen sc1
    L_T4s:
    s_mov_b64 exec, -1''')
    for e in range(16):
        a(f'v_mul_f32 v{ACC+e}, v{ACC+e}, v12')
    for p in range(8):
        a(f'v_cvt_pk_bf16_f32 v{PP+p}, v{ACC+2*p}, v{ACC+2*p+1}')
    stamp(6)
    vm.wait(kid[23])
    unit_mfma(D, PP, T, VR, False)
    vm.wait(kid[31])
    stamp(7)
    unit_mfma(D, PP+4, T, VR+32, True)
    part_to_lds(D, T, 22)
    a('s_mov_b32 s100, 0                      ; part\ns_waitcnt lgkmcnt(0)')
    a.label('L_TAIL')
    call_pub()
    stamp(8)
    rawstamp(14, 's95')
    G = 32
    a(f'''
    s_cmp_eq_u32 s28, 1
    s_cbranch_scc1 L_done
    s_cmp_eq_u32 s28, 0
    s_cbranch_scc1 L_T5
    v_add_u32 v3, 0x2000, v3
    v_lshrrev_b32 v8, 4, v0
    v_bfe_u32 v7, v0, 2, 2
    v_lshlrev_b32 v7, 11, v7
    v_lshl_add_u32 v7, v8, 16, v7
    v_and_b32 v8, 3, v0
    v_lshl_add_u32 v7, v8, 4, v7
    s_and_b32 s26, s28, 1
    s_mov_b32 s95, 1
    ''')
    sum_terms('s98', [('s100', 18), ('s6', 14), ('s26', 13), ('s5', 6)], FIN)
    call_pub()
    stamp(9)
    a('s_branch L_done')
    a.label('L_T5')
    srd(20, PT['out'], 8192)
    sum_terms('s25', [('s100', 18), ('s4', 11)], FIN)
    a(f'''
    v_lshlrev_b32 v2, 4, v0
    v_and_b32 v3, 3, v0
    v_lshrrev_b32 v4, 4, v0
    v_lshl_add_u32 v3, v3, 3, v4
    v_lshlrev_b32 v3, 1, v3
    s_lshr_b32 s26, s4, 5                 ; b
    s_bfe_u32 s29, s4, 0x20003            ; cq
    s_bfe_u32 s96, s4, 0x10002            ; half
    ''')
    sum_terms('s27', [('s26', 11), ('s100', 10), ('s29', 8), ('s6', 6), ('s96', 3)], 0)
    a(f'''
    s_mov_b32 s7, 0
    s_waitcnt vmcnt(0)
    s_barrier                              ; A6 / B5
    L_T5p:
    buffer_load_dwordx4 {vr(G)}, v2, {WS}, s25 offen sc1
    buffer_load_dwordx4 {vr(G+4)}, v2, {WS}, s25 offen offset:1024 sc1
    s_waitcnt vmcnt(1)
    ''')
    strip4(5, G, True)
    a('s_waitcnt vmcnt(0)')
    strip4(5, G+4, False)
    poll_tail(5, 'L_T5p')
    stamp(10)
    for e in range(4): a(f'v_add_f32 v{G+e}, v{G+e}, v{G+4+e}')
    a(f'''
    v_permlane32_swap_b32 v{G}, v{G+2}
    v_permlane32_swap_b32 v{G+1}, v{G+3}
    v_add_f32 v{G}, v{G}, v{G+2}
    v_add_f32 v{G+1}, v{G+1}, v{G+3}
    v_permlane16_swap_b32 v{G}, v{G+1}
    v_add_f32 v{G}, v{G}, v{G+1}
    v_add_f32_dpp v{G}, v{G}, v{G} row_ror:8 row_mask:0xf bank_mask:0xf
    v_add_f32_dpp v{G}, v{G}, v{G} row_ror:4 row_mask:0xf bank_mask:0xf
    v_cvt_pk_bf16_f32 v{G}, v{G}, v{G}
    s_mov_b32 exec_lo, 0x000f000f
    s_mov_b32 exec_hi, 0x000f000f
    buffer_store_short v{G}, v3, {S2}, s27 offen
    s_cmp_eq_u32 s2, 128
    s_cbranch_scc0 L_T5e
    s_mov_b64 exec, 1
    v_mov_b32 v6, s24
    buffer_store_dword v6, v2, {WS}, 0 offen sc1
    L_T5e:
    ''')
    assert EPOCH == 0
    stamp(11)
    rawstamp(12, 's7')
    a('s_branch L_done')

    a.label('L_B')
    if P['noB']: a('s_waitcnt lgkmcnt(0)\ns_branch L_done')
    a('''
    s_cmp_ge_u32 s3, 4
    s_cbranch_scc1 L_U2
    ''')
    SA = 16; CF = 64; TR = 192; QB = 224; TG = 32
    a('v_lshlrev_b32 v1, 4, v0')
    for f in range(1, 8):
        a(f'v_xor_b32 v{1+f}, {f*32}, v1')
    a(f'''
    s_lshl_b32 s26, s3, 15
    s_lshl_b32 s25, s4, 17
    s_add_u32 s25, s25, s26
    s_mov_b32 s18, 0x1000000
    s_mov_b32 s19, 0x20000
    s_waitcnt lgkmcnt(0)
    ''')
    srdp(16, PT['ckv'])
    epoch_issue()
    vm = VM(a)
    cid = []
    for k in range(32):
        if (k & 3) == 0:
            a(f's_mov_b32 m0, s26')
        vm.pace(P['c_first'] if k < P['c_nfirst'] else P['c_depth'])
        cid.append(vm.op(f'buffer_load_dwordx4 v{1+(k&7)}, {SW}, s25 offen offset:{(k&3)*1024} {NT} lds'))
        if k == P['x1_at']: a('s_barrier                              ; X1')
        if k == P['b0_at']: a('s_barrier                              ; B0')
        if (k & 3) == 3 and k != 31:
            a('s_add_u32 s25, s25, 4096\ns_add_u32 s26, s26, 4096')
    stamp(1)
    epoch_finish()
    a(tag_regs(TG, 36, 37))
    a(f'''
    v_lshrrev_b32 v9, 4, v0               ; g
    v_and_b32 v10, 15, v0                 ; n
    s_mov_b32 s98, {hex(CSC)}
    v_and_b32 v5, 7, v0
    v_lshlrev_b32 v5, 1, v5
    v_xor_b32 v5, v5, v9
    v_lshlrev_b32 v5, 4, v5
    v_lshl_add_u32 v1, v10, 10, v5
    s_lshl_b32 s26, s3, 15
    v_add_u32 v1, s26, v1
    v_xor_b32 v2, 64, v1
    v_xor_b32 v3, 128, v1
    v_xor_b32 v4, 192, v1
    v_lshrrev_b32 v6, 2, v0
    v_and_b32 v7, 7, v6
    v_lshlrev_b32 v7, 5, v7
    v_lshl_add_u32 v5, v6, 10, v7
    v_and_b32 v7, 3, v0
    v_lshl_add_u32 v5, v7, 3, v5
    s_mul_i32 s27, s3, 33024
    v_add_u32 v5, s27, v5
    v_lshlrev_b32 v11, 19, v9
    v_lshl_add_u32 v11, v10, 4, v11
    {"v_lshlrev_b32 v38, 11, v0" if P['ost'] == 'h' else "v_lshlrev_b32 v38, 13, v6" + chr(10) + "v_lshl_add_u32 v38, v7, 4, v38"}
    v_mov_b32 v42, s24
    v_mov_b32 v43, s24
    v_lshlrev_b32 v45, 3, v10
    v_lshrrev_b32 v44, 5, v0
    v_lshl_add_u32 v44, v44, 2, v45
    v_add_u32 v44, s27, v44
    v_add_u32 v46, 66048, v45
    s_lshl_b32 s27, s3, 11
    s_add_u32 s27, s27, 0x20000
    v_lshl_add_u32 v47, v0, 4, s27
    ''')
    sum_terms('s25', [('s3', 15), ('s4', 8)], OP)
    sum_terms('s99', [('s4', 4 if P['ost'] == 'h' else 6)], OST)
    def tr_reads(dst, step, jjs):
        for jj in jjs:
            t = 6 + (jj & 1)
            a(f'v_xor_b32 v{t}, {hex(jj*32 | step << 15)}, v5')
            a(f'ds_read_b64_tr_b16 {vr(dst+4*jj, 2)}, v{t}')
            a(f'ds_read_b64_tr_b16 {vr(dst+4*jj+2, 2)}, v{t} offset:16384')
    for kt in range(2):
        vm.wait(cid[16*kt+15])
        if kt == 1: stamp(2)
        for ks in range(16):
            a(f'ds_read_b128 {vr(CF+8*ks+4*kt)}, v{1+(ks&3)} offset:{kt*16384+(ks>>2)*256}')
    tr_reads(TR, 0, range(8))
    a(f'''
    s_sub_u32 s27, 0x20000, s26
    v_add_u32 v1, s27, v1
    v_add_u32 v2, s27, v2
    v_add_u32 v3, s27, v3
    v_add_u32 v4, s27, v4
    s_waitcnt lgkmcnt(0)
    ''')
    stamp(3)
    a('s_barrier                              ; B1')
    stamp(4)
    def q_read(ks):
        for ht in range(2):
            a(f'ds_read_b128 {vr(QB+8*(ks&3)+4*ht)}, v{1+(ks&3)} offset:{ht*16384+(ks>>2)*256}')
    for ks in range(3): q_read(ks)
    for ks in range(16):
        if ks + 3 < 16: q_read(ks + 3)
        a(f's_waitcnt lgkmcnt({2*min(3, 15-ks)})')
        for kt in range(2):
            for ht in range(2):
                d = SA + 8*ht + 4*kt
                a(f'v_mfma_f32_16x16x32_bf16 {vr(d)}, {vr(CF+8*ks+4*kt)}, {vr(QB+8*(ks&3)+4*ht)}, {vr(d) if ks else 0}')
    for ht in range(2):
        b = SA + 8*ht
        a(f'''v_max3_f32 v{12+ht}, v{b}, v{b+1}, v{b+2}
        v_max3_f32 v{12+ht}, v{12+ht}, v{b+3}, v{b+4}
        v_max3_f32 v{12+ht}, v{12+ht}, v{b+5}, v{b+6}
        v_max_f32 v{12+ht}, v{12+ht}, v{b+7}''')
    a(f'''
    v_permlane32_swap_b32 v12, v13
    v_max_f32 v12, v12, v13
    v_mov_b32 v13, v12
    v_permlane16_swap_b32 v12, v13
    v_max_f32 v12, v12, v13
    ds_write_b32 v44, v12
    s_waitcnt lgkmcnt(0)
    ''')
    stamp(5)
    E0 = 64
    a(f'''
    s_barrier                              ; B2
    ds_read_b64 {vr(E0, 2)}, v45
    ds_read_b64 {vr(E0+2, 2)}, v45 offset:33024
    ds_read_b64 {vr(E0+4, 2)}, v46
    ds_read_b64 {vr(E0+6, 2)}, v46 offset:33024
    s_waitcnt lgkmcnt(0)
    v_max3_f32 v12, v{E0}, v{E0+2}, v{E0+4}
    v_max3_f32 v13, v{E0+1}, v{E0+3}, v{E0+5}
    v_max_f32 v12, v12, v{E0+6}
    v_max_f32 v13, v13, v{E0+7}
    v_mul_f32 v12, s98, v12
    v_mul_f32 v13, s98, v13
    ''')
    for e in range(16):
        a(f'v_fma_f32 v{SA+e}, v{SA+e}, s98, -v{12+(e>>3)}')
    for e in range(16):
        a(f'v_exp_f32 v{SA+e}, v{SA+e}')
    PF = 72
    for p in range(8):
        a(f'v_cvt_pk_bf16_f32 v{PF+p}, v{SA+2*p}, v{SA+2*p+1}')
    a(f'''
    ds_write_b128 v47, {vr(PF)}
    ds_write_b128 v47, {vr(PF+4)} offset:1024
    ''')
    for ht in range(2):
        b = SA + 8*ht
        for st in (4, 2):
            for e in range(st):
                a(f'v_add_f32 v{b+e}, v{b+e}, v{b+st+e}')
        a(f'v_add_f32 v{14+ht}, v{b}, v{b+1}')
    a(f'''
    v_permlane32_swap_b32 v14, v15
    v_add_f32 v14, v14, v15
    v_mov_b32 v15, v14
    v_permlane16_swap_b32 v14, v15
    v_add_f32 v14, v14, v15
    ds_write_b32 v44, v14 offset:128
    ''')
    OA0 = 160; OA1 = 224; TR2 = 104
    def oacc(ht, jj): return (OA0, OA1)[ht] + 4*jj
    def pv(step, jj, ht):
        tr = (TR, TR2)[step & 1]
        d = oacc(ht, jj)
        a(f'v_mfma_f32_16x16x32_bf16 {vr(d)}, {vr(PF+8*step+4*ht)}, {vr(tr+4*jj)}, {vr(d) if step else 0}')
    for jj in range(2):
        for ht in range(2): pv(0, jj, ht)
    a('s_waitcnt lgkmcnt(0)')
    stamp(6)
    a(f'''
    s_barrier                              ; B3
    ds_read_b64 {vr(E0, 2)}, v45 offset:128
    ds_read_b64 {vr(E0+2, 2)}, v45 offset:{33024+128}
    ds_read_b64 {vr(E0+4, 2)}, v46 offset:128
    ds_read_b64 {vr(E0+6, 2)}, v46 offset:{33024+128}
    ''')
    for st in range(1, 4):
        a(f'v_xor_b32 v8, {st << 11}, v47')
        a(f'ds_read_b128 {vr(PF+8*st)}, v8')
        a(f'ds_read_b128 {vr(PF+8*st+4)}, v8 offset:1024')
    tr_reads(TR2, 1, range(0, 2))
    for jj in range(2, 8):
        for ht in range(2): pv(0, jj, ht)
        tr_reads(TR2, 1, [jj])
    side1 = f'''v_add_f32 v14, v{E0}, v{E0+2}
    v_add_f32 v15, v{E0+1}, v{E0+3}
    v_add_f32 v14, v14, v{E0+4}
    v_add_f32 v15, v15, v{E0+5}
    v_add_f32 v14, v14, v{E0+6}
    v_add_f32 v15, v15, v{E0+7}
    v_cmp_gt_u32 vcc, 16, v0
    s_lshl_b32 s92, s3, 3
    s_lshl_b64 s[92:93], 0xff, s92
    s_mov_b32 s26, 0xfffefffe
    v_cndmask_b32 v40, v13, v12, vcc
    v_cndmask_b32 v41, v15, v14, vcc'''.split('\n')
    def stats_store():
        a('s_mov_b64 exec, s[92:93]')
        vm.op(f'buffer_store_dwordx4 v[40:43], v38, {WS}, s99 offen sc1')
        a('s_mov_b64 exec, -1')
    for st in (1, 2):
        nxt = (TR, TR2)[(st+1) & 1]
        side = (side1, [])[st-1]
        if P['stat_step'] == st and st == 2: stats_store()
        for jj in range(8):
            a('s_waitcnt lgkmcnt(14)')
            for ht in range(2): pv(st, jj, ht)
            tr_reads(nxt, st+1, [jj])
            for s in side[2*jj:2*jj+2]: a(s)
    if P['stat_step'] == 3: stats_store()
    a('s_waitcnt lgkmcnt(0)')
    for ht in range(2):
        for jj in range(8): pv(3, jj, ht)
    PKO = 192
    for ht in range(2):
        for r in range(4):
            o = PKO + 16*ht + 4*r
            for p in range(4):
                a(f'v_cvt_pk_bf16_f32 v{o+p}, v{oacc(ht, 2*p)+r}, v{oacc(ht, 2*p+1)+r}')
            for p in range(4):
                a(f'v_and_or_b32 v{o+p}, v{o+p}, s26, v{TG+p}')
            if not P['noO']: vm.op(f'buffer_store_dwordx4 {vr(o)}, v11, {WS}, s25 offen sc1')
            if not (ht == 1 and r == 3):
                a(f's_add_u32 s25, s25, {131072 if r < 3 else 13*131072}')
        if P['stat_step'] == 4 + ht: stats_store()
    stamp(7)
    a(f's_waitcnt vmcnt({P["o_gate"]})\ns_barrier                              ; B3b')
    stamp(13)
    xt_issue(16)
    pub_setup(LPB)
    sum_terms('s98', [('s5', 13), ('s6', 8), ('s101', 0)], XC)
    a('s_mov_b32 s100, 1\ns_waitcnt vmcnt(0)')
    xt_finish(16)
    a('s_barrier                              ; B3c\ns_branch L_TAIL')
    a.label('L_U2')
    RAW = 32; T = 64; G = 96; UT = 128; D = 160; UV = 192; D2 = 192; QA = 224; TG = 28; WT_ = 16; XO_ = 24
    sched = list(map(int, P['b_sched'].split(',')))
    assert sum(sched) == 16
    assert 0 <= P['x1_at'] < P['b0_at']
    a(f'''
    v_lshrrev_b32 v12, 4, v0              ; g
    v_and_b32 v13, 15, v0                 ; n
    v_lshlrev_b32 v1, 18, v12
    v_lshl_add_u32 v1, v13, 4, v1         ; W voffset = g*32*8192 + n*16
    v_lshrrev_b32 v14, 2, v13             ; b
    v_lshlrev_b32 v2, 6, v12
    v_lshl_add_u32 v2, v14, 10, v2        ; x voffset = b*1024 + g*64
    s_lshl_b32 s92, s28, 11
    s_add_u32 s92, s92, {hex(LPB)}
    v_lshl_add_u32 v3, v0, 4, s92
    s_mov_b32 s94, 0
    ''')
    sum_terms('s25', [('s6', 20), ('s5', 8), ('s28', 16)], 0)
    sum_terms('s26', [('s6', 8), ('s28', 4)], 0)
    a('s_waitcnt lgkmcnt(0)')
    epoch_issue()
    xt_publish(20)
    srd(16, PT['wq'], 0x400000)
    srd(20, PT['A_x'], 0x1000)
    if P['codepf']:
        a(f'''
        s_getpc_b64 s[96:97]
        L_pc1:
        s_sub_u32 s96, s96, L_pc1-{NAME}_kernel
        s_subb_u32 s97, s97, 0
        s_and_b32 s92, s4, 15
        s_lshl_b32 s92, s92, 10
        s_lshl_b32 s98, s28, 8
        s_add_u32 s92, s92, s98
        v_lshl_add_u32 v6, v0, 2, s92
        v_min_u32 v6, L_exit-{NAME}_kernel-4, v6
        global_load_dword v23, v6, s[96:97]
        ''')
    tlb_warm(24)
    vm = VM(a)
    vm.op(f'buffer_load_dwordx4 v[16:19], v2, {S2}, s26 offen')
    for k in range(8):
        vm.pace(P['wq_depth'])
        vm.op(f'buffer_load_dwordx4 {vr(RAW+4*k)}, v1, {SW}, s25 offen {NT}')
        if k < 7: a('s_add_u32 s25, s25, 0x2000')
    perm_consts()
    epoch_finish()
    a('s_waitcnt vmcnt(0)')
    stamp(11)
    xt_issue(22)
    a('s_branch L_GEMV\nL_U2b:')
    pub_setup(LPB)
    sum_terms('s98', [('s5', 13), ('s6', 8), ('s101', 0)], XQ2)
    a('s_waitcnt vmcnt(0)')
    xt_finish(22)
    a('s_waitcnt lgkmcnt(0)')
    call_pub()
    stamp(10)
    a(f'''
    v_lshlrev_b32 v10, 4, v13
    v_lshl_add_u32 v4, v12, 13, v10
    v_lshl_add_u32 v1, v12, 11, v10
    v_lshlrev_b32 v5, 4, v0
    s_lshr_b32 s26, s4, 4
    s_lshr_b32 s27, s4, 5                 ; b
    ''')
    srdp(16, PT['w_o'])
    srd(20, PT['w_uv'], 0x400000)
    sum_terms('s25', [('s5', 17), ('s28', 15), ('s6', 8)], 0)
    sum_terms('s29', [('s6', 20), ('s28', 15), ('s5', 8)], 0)
    wl = list(range(16))
    def w_loads(n):
        for _ in range(n):
            e = wl.pop(0)
            if e < 8:
                a(f'buffer_load_dwordx4 {vr(UV+4*e)}, v4, {S2}, s29 offen {NT}')
                if e < 7: a(f's_add_u32 s29, s29, {16*8192}')
            else: wproj_load(e - 8)
    w_loads(sched[0])
    sum_terms('s96', [('s26', 12), ('s28', 10)], QFLAG)
    sum_terms('s97', [('s27', 15), ('s28', 13)], QABS)
    sum_terms('s99', [('s5', 13), ('s28', 11)], XC)
    a(f'''
    s_add_u32 s98, s97, 4096
    s_lshl_b32 s92, s28, 13
    s_add_u32 s92, s92, 0x20000
    v_add_u32 v{T}, s92, v5
    ''')
    for e in range(1, 8):
        a(f'v_xor_b32 v{T+e}, {e*32}, v{T}')
    sst = 4 if P['ost'] == 'h' else 6
    LX = 0x23000
    a(f'''
    v_and_b32 v6, 7, v0
    v_lshlrev_b32 v6, 7, v6
    v_and_b32 v11, 3, v0
    v_lshl_add_u32 v11, v12, 2, v11
    v_lshlrev_b32 v11, {sst+1}, v11
    s_lshl_b32 s92, s28, 8
    s_add_u32 s92, s92, {hex(LX)}
    v_add_u32 v2, s92, v10
    s_lshl_b32 s92, s28, 6
    s_add_u32 s92, s92, {hex(LX)}
    v_lshl_add_u32 v7, v12, 4, s92
    v_lshl_add_u32 v7, v14, 8, v7
    s_lshl_b32 s92, s28, 11
    s_add_u32 s92, s92, {hex(LPB)}
    v_add_u32 v3, s92, v5
    s_and_b32 s27, s5, 3
    v_mov_b32 v20, 1.0
    s_mov_b32 s94, 4
    ''')
    if P['ost'] == 'h': sum_terms('s100', [('s5', 11), ('s28', 9)], OST)
    else: sum_terms('s100', [('s26', 13), ('s27', 4), ('s28', 11)], OST)
    sum_terms('s101', [('s4', 15), ('s28', 13)], OP)
    a(tag_regs(TG, 21, 22))
    a('v_mov_b32 v21, 0')
    if P['b0_at'] >= 0: a('s_barrier                              ; B0')
    a(f'''
    s_mov_b32 s7, 0
    s_mov_b64 exec, 0xff
    L_qf:
    buffer_load_dword v8, v6, {WS}, s96 offen sc1
    s_waitcnt vmcnt(0)
    v_xor_b32 v8, s24, v8
    ''')
    poll_tail(8, 'L_qf', mask=None)
    stamp(1)
    a('s_mov_b64 exec, -1\ns_mov_b32 s7, 0\nL_qg:')
    for e in range(8):
        a(f'buffer_load_dwordx4 {vr(QA+4*e)}, v5, {WS}, {"s97" if e < 4 else "s98"} offen offset:{(e&3)*1024} sc1')
    for e in range(8):
        a(f's_waitcnt vmcnt({7-e})')
        strip4(8, QA+4*e, e == 0, tags=TG)
        a(f'ds_write_b128 v{T+e}, {vr(QA+4*e)} offset:{e*1024}')
    a('s_waitcnt lgkmcnt(0)')
    poll_tail(8, 'L_qg', mask=0x10001)
    stamp(2)
    rawstamp(13, 's7')
    a('s_barrier                              ; B1')
    w_loads(sched[1])
    a('s_barrier                              ; B2')
    w_loads(sched[2])
    a('s_barrier                              ; B3')
    w_loads(sched[3])
    issued = 16 - len(wl); assert issued >= 8
    a(f's_waitcnt vmcnt({issued - max(8, sched[0])})')
    stamp(3)
    for jj in range(8):
        transpose_tile(UT+4*jj, UV, jj)
    nw = sched[4]
    def op_loads():
        a(f'''s_mov_b64 exec, s[96:97]
        buffer_load_dwordx4 v[12:15], v11, {WS}, s100 offen sc1
        buffer_load_dwordx4 v[16:19], v11, {WS}, s100 offen offset:{1 << sst} sc1
        s_mov_b64 exec, -1''')
        for k in range(8):
            a(f'buffer_load_dwordx4 {vr(G+4*k)}, v1, {WS}, s101 offen offset:{256*k} sc1')
    a('s_mov_b32 s96, 0x000f000f\ns_mov_b32 s97, 0x000f000f\ns_mov_b32 s7, 0\ns_barrier                              ; B3b')
    if nw:
        op_loads()
        w_loads(nw)
        a('s_branch L_U2c')
    a.label('L_U2g')
    op_loads()
    if nw: a('s_waitcnt vmcnt(0)')
    a.label('L_U2c')
    a(f'''
    s_mov_b64 exec, s[96:97]
    s_waitcnt vmcnt({8+nw})
    v_xor_b32 v21, s24, v14
    v_bitop3_b32 v21, v15, s24, v21 bitop3:0xbe
    v_bitop3_b32 v21, v18, s24, v21 bitop3:0xbe
    v_bitop3_b32 v21, v19, s24, v21 bitop3:0xbe
    s_mov_b64 exec, -1
    ''')
    stamp(4)
    a('v_max_f32 v8, v12, v16')
    allreduce_quad('v_max_f32', 8)
    allreduce_rows('v_max_f32', 8, 14)
    a('''
    v_sub_f32 v12, v12, v8
    v_sub_f32 v16, v16, v8
    v_exp_f32 v12, v12
    v_exp_f32 v16, v16
    v_mul_f32 v8, v12, v13
    v_fmac_f32 v8, v16, v17
    ''')
    allreduce_quad('v_add_f32', 8)
    allreduce_rows('v_add_f32', 8, 14)
    a('''
    v_rcp_f32 v8, v8
    v_mul_f32 v12, v12, v8
    v_mul_f32 v16, v16, v8
    v_cvt_pk_bf16_f32 v12, v12, v16
    ''')
    for p in range(4):
        a(f'v_mov_b32_dpp v{WT_+p}, v12 quad_perm:[{p},{p},{p},{p}] row_mask:0xf bank_mask:0xf')
    for k in range(8):
        a(f's_waitcnt vmcnt({7-k+nw})')
        strip4(8, G+4*k, k == 0, tags=TG)
    a(f's_mov_b32 s92, {0 if P["noO"] else 0x10001}\nv_and_or_b32 v8, v8, s92, v21')
    poll_tail(8, 'L_U2g', mask=None)
    stamp(5)
    rawstamp(14, 's7')
    unit_mfma(D, WT_, T, G, False)
    for p in range(4):
        a(f'v_cvt_pk_bf16_f32 v{12+p}, v{D+8*p}, v{D+8*p+4}')
    a(f'''
    s_mov_b64 exec, 0xffff
    ds_write_b128 v2, v[12:15]
    s_mov_b64 exec, -1
    s_waitcnt lgkmcnt(0)
    s_barrier                              ; B3c
    ds_read_b128 {vr(XO_)}, v7
    s_waitcnt lgkmcnt(0)
    ''')
    for jj in range(8):
        a(f'v_mfma_f32_16x16x32_bf16 {vr(D2+4*jj)}, {vr(XO_)}, {vr(UT+4*jj)}, 0')
    part_to_lds(D2, T, 3)
    stamp(6)
    a('v_add_u32 v3, 0x2000, v3\ns_branch L_CON')
    a.label('L_done')
    if P['cal']:
        wg, wv, idx, mult = map(int, P['cal'].split(','))
        a(f'''
        s_cmp_eq_u32 s2, {wg}
        s_cbranch_scc0 L_exit
        s_cmp_eq_u32 s3, {wv}
        s_cbranch_scc0 L_exit
        s_waitcnt lgkmcnt(0)
        s_sub_u32 s25, s{32+2*idx}, s32
        s_mul_i32 s25, s25, {mult}
        s_add_u32 s25, s25, 6000
        s_min_u32 s25, s25, 100000
        L_cal:
        s_memrealtime s[26:27]
        s_waitcnt lgkmcnt(0)
        s_sub_u32 s26, s26, s32
        s_cmp_lt_u32 s26, s25
        s_cbranch_scc1 L_cal
        ''')
    elif diag:
        a(f'''
        s_waitcnt lgkmcnt(0)
        s_lshl_b32 s25, s2, 3
        s_add_u32 s25, s25, s3
        s_lshl_b32 s25, s25, 7
        s_add_u32 s25, s25, {hex(STAMP)}
        s_mov_b64 exec, -1
        ''')
        for k in range(32): a(f'v_writelane_b32 v4, s{32+k}, {k}')
        a(f'''v_lshlrev_b32 v0, 2, v0
        s_mov_b32 exec_hi, 0
        buffer_store_dword v4, v0, {WS}, s25 offen''')
    a.label('L_exit')
    a('s_endpgm')
    body, added = hazard.fix(a.text())
    return kernel_file([(NAME + '_kernel', body, 256, 102, 256)], [(NAME + '_kernel', 256, 512, 163840)]), added

def parse(argv):
    P = {}
    for kv in argv:
        k, v = kv.split('=')
        if v in ('True', 'False'): v = (v == 'True')
        else:
            try: v = int(v, 0)
            except ValueError: pass
        P[k] = v
    return P
if __name__ == '__main__':
    out = sys.argv[1]
    txt, added = gen(parse(sys.argv[2:]))
    open(out, 'w').write(txt)
    print(out, 'nop states added', added)
```
